```python
import torch

def _softmax(x, axis=-1):
    return torch.softmax(x, dim=axis)
def _gelu(x):
    return torch.nn.functional.gelu(x, approximate="tanh")
def _silu(x):
    return torch.nn.functional.silu(x)
def _sigmoid(x):
    return torch.sigmoid(x)
def _layernorm(x, axis=-1, eps=1e-5):
    m = x.mean(dim=axis, keepdim=True)
    v = x.var(dim=axis, keepdim=True, unbiased=False)
    return (x - m) / torch.sqrt(v + eps)
def _scatter_add(tgt, idx, src, axis=0):
    return tgt.clone().index_add_(axis, idx, src)
def _segment_sum(src, seg, n):
    out = torch.zeros((n,) + src.shape[1:], dtype=src.dtype)
    return out.index_add_(0, seg, src)
def _pad(x, pw):
    flat = tuple(v for pair in reversed(pw) for v in pair)
    return torch.nn.functional.pad(x, flat)

kernel_name = 'standalone__mha_softmax__near_ridge'

def setup_inputs():

    _w = (lambda a: (lambda t: t.to(torch.bfloat16) if t.is_floating_point() else t)(torch.as_tensor(a)))
    B, H, Sq, Sk, D = 16, 32, 288, 512, 128
    return {
        "q": _w((lambda *s: torch.randn(*s, dtype=torch.bfloat16) * 0.8)(B, H, Sq, D)),
        "k": _w((lambda *s: torch.randn(*s, dtype=torch.bfloat16) * 0.8)(B, H, Sk, D)),
        "v": _w((lambda *s: torch.randn(*s, dtype=torch.bfloat16) * 0.05)(B, H, Sk, D)),
    }

def reference(q, k, v):
    scale = q.shape[-1] ** -0.5
    scores = torch.einsum("bhqd,bhkd->bhqk", q, k) * scale
    p = _softmax(scores, axis=-1)
    return torch.einsum("bhqk,bhkd->bhqd", p, v)
```

```python
import struct
import sys

NAME = "standalone__mha_softmax__near_ridge"

WSTR = 4112
STAGE = 4 * WSTR
NSTAGE = 5
RING = NSTAGE * STAGE
WREG = 17408
W0 = RING
QSTR = 2064
QUNIT = 4 * QSTR
QC = W0 + 4 * WREG
ML = QC + QUNIT
FLAG = ML + 1024
LDS_BYTES = FLAG + 64
assert LDS_BYTES <= 163840

sW = 3
SRD_Q, SRD_K, SRD_V, SRD_O = 12, 16, 20, 24
sC, sRd, sOff, sWStr, sT, sHead, sExact = 28, 29, 30, 31, 32, 33, 34
sQn, sQm0, sQoff, sQCm0, sQCoff, sWbase = 35, 36, 37, 38, 39, 40
sT0, sT1, sT2, sLim, sCold, sOo = 41, 42, 43, 44, 45, 46
sF = 48
sWS = 52
sStamp = 60

vLane, vDMA, vKb, vVb, vK, vV, vQb = 0, 1, 2, 3, 4, 5, 6
vM = {"A": 7, "B": 8, "C": 9}
vL = {"A": 10, "B": 11, "C": 12}
vT0, vT1, vT2 = 13, 14, 15
vS = {"A": 16, "B": 32, "C": 48}
vP = {"A": 64, "B": 72, "C": 80}
vStW, vStR, vCW, vCR, vMLW, vMLR, vOst, vQC = 88, 89, 90, 91, 92, 93, 94, 95
vO = {"A": 96, "B": 160}
vX = 224
aOC = 0
aQ = {"A": 64, "B": 96, "C": 128}
aK = 160
aV = 192


def f2u(x):
    return struct.unpack("<I", struct.pack("<f", x))[0]


def vr(b, n=1):
    return f"v{b}" if n == 1 else f"v[{b}:{b+n-1}]"


def ar(b, n=1):
    return f"a{b}" if n == 1 else f"a[{b}:{b+n-1}]"


def oreg(X, db):
    return ar(aOC + 16 * db, 16) if X == "C" else vr(vO[X] + 16 * db, 16)


class Gen:
    def __init__(self, ld="nt", st="nt", stamps=False, lim=30, opt=None):
        self.L = []
        self.ld = ld
        self.st = st
        self.stamps = stamps
        self.lim = lim
        self.opt = opt or {}
        self.nstamp = 0

    def e(self, s):
        self.L.append(s if s.endswith(":") else "    " + s)

    def many(self, lst):
        for s in lst:
            self.e(s)

    def stamp(self, idx, perhead=True):
        if not self.stamps:
            return
        if perhead:
            lab = f"L_st{self.nstamp}"
            self.nstamp += 1
            self.e(f"s_cmp_eq_u32 s{sHead}, 0")
            self.e(f"s_cbranch_scc1 {lab}a")
            self.e(f"s_memrealtime s[{sStamp+2*(idx+6)}:{sStamp+2*(idx+6)+1}]")
            self.e(f"s_branch {lab}b")
            self.e(f"{lab}a:")
            self.e(f"s_memrealtime s[{sStamp+2*idx}:{sStamp+2*idx+1}]")
            self.e(f"{lab}b:")
        else:
            self.e(f"s_memrealtime s[{sStamp+2*idx}:{sStamp+2*idx+1}]")
        self.e("s_waitcnt lgkmcnt(0)")

    def qk(self, X, ks):
        c = "0" if ks == 0 else vr(vS[X], 16)
        return f"v_mfma_f32_32x32x16_bf16 {vr(vS[X],16)}, {ar(aK+4*ks,4)}, {ar(aQ[X]+4*ks,4)}, {c}"

    def pv(self, X, f):
        db, kk = f >> 1, f & 1
        o = oreg(X, db)
        return f"v_mfma_f32_32x32x16_bf16 {o}, {ar(aV+4*f,4)}, {vr(vP[X]+4*kk,4)}, {o}"

    def kread(self, ks, addr=vK):
        return f"ds_read_b128 {ar(aK+4*ks,4)}, v{addr} offset:{(ks>>1)*256+(ks&1)*32}"

    def vread(self, i):
        f, s = i >> 1, i & 1
        db, kk = f >> 1, f & 1
        return f"ds_read_b64_tr_b16 {ar(aV+4*f+2*s,2)}, v{vV} offset:{2048+(2*kk+s)*WSTR+db*256}"

    def qread(self, X, ks):
        addr, base = (vQC, 0) if X == "C" else (vQb, 0 if X == "A" else QUNIT)
        return f"ds_read_b128 {ar(aQ[X]+4*ks,4)}, v{addr} offset:{base+(ks>>1)*256+(ks&1)*32}"

    def dma(self, srd, soff, off):
        o = f" offset:{off}" if off else ""
        return f"buffer_load_dwordx4 v{vDMA}, s[{srd}:{srd+3}], s{soff} offen{o} {self.ld} lds"

    def stage_ops(self):
        return [
            [f"s_add_u32 m0, s{sRd}, s{sWStr}", f"s_add_u32 s{sRd}, s{sRd}, {STAGE}", self.dma(SRD_K, sOff, 0)],
            [f"s_cmp_eq_u32 s{sRd}, {RING}", f"s_cselect_b32 s{sRd}, 0, s{sRd}", self.dma(SRD_K, sOff, 1024)],
            [f"v_add_u32 v{vK}, s{sRd}, v{vKb}", self.dma(SRD_V, sOff, 2048)],
            [f"v_add_u32 v{vV}, s{sRd}, v{vVb}", self.dma(SRD_V, sOff, 3072), f"s_add_u32 s{sOff}, s{sOff}, 8192"],
        ]

    def qpass(self):
        return [
            f"s_mov_b32 m0, s{sQm0}",
            f"s_sub_u32 s{sQn}, s{sQn}, 1",
            self.dma(SRD_Q, sQoff, 0),
            self.dma(SRD_Q, sQoff, 1024),
            f"s_add_u32 s{sQm0}, s{sQm0}, {QSTR}",
            f"s_add_u32 s{sQoff}, s{sQoff}, 2048",
            f"s_cmp_eq_u32 s{sQn}, 1",
            f"s_cselect_b32 s{sQm0}, s{sQCm0}, s{sQm0}",
            f"s_cselect_b32 s{sQoff}, s{sQCoff}, s{sQoff}",
        ]

    def arm_q(self, head_sreg):
        e = self.e
        e(f"s_mul_i32 s{sT0}, s{head_sreg}, 73728")
        e(f"s_lshl_b32 s{sT1}, s{sW}, 14")
        e(f"s_add_u32 s{sQoff}, s{sT0}, s{sT1}")
        e(f"s_lshl_b32 s{sT1}, s{sW}, 11")
        e(f"s_add_u32 s{sQCoff}, s{sT0}, s{sT1}")
        e(f"s_add_u32 s{sQCoff}, s{sQCoff}, 65536")
        e(f"s_mov_b32 s{sQm0}, s{sWbase}")
        e(f"s_mov_b32 s{sQn}, 9")

    def sm_gaps(self, X):
        S, P, m, l = vS[X], vP[X], vM[X], vL[X]
        fma = lambda i: f"v_fma_f32 v{S+i}, v{S+i}, s{sC}, -v{m}"
        ex = lambda i: f"v_exp_f32 v{S+i}, v{S+i}"
        add = lambda i: f"v_add_f32 v{l}, v{l}, v{S+i}"
        cvt = lambda j: f"v_cvt_pk_bf16_f32 v{P+j}, v{S+2*j}, v{S+2*j+1}"
        g = []
        for i in range(16):
            pre, post = [], []
            if i == 0:
                pre += [fma(0), fma(1)]
                post += [ex(0)]
            elif i < 15:
                pre += [fma(i + 1)]
                post += [ex(i), add(i - 1)]
                if i % 2 == 0:
                    post += [cvt(i // 2 - 1)]
            else:
                pre += [ex(15), add(14)]
                post += [add(15), cvt(7)]
            g.append((pre, post))
        return g

    def header(self):
        ref = open(f"cdna_kernels/{NAME}.s.ref").read().split("\n")
        for line in ref:
            if line.startswith("; @launch"):
                break
            self.L.append(line)
        self.L.append(f"; @launch grid=(256,1,1) block=(256,1,1) lds={LDS_BYTES}")
        self.L.append('.amdgcn_target "amdgcn-amd-amdhsa--gfx950"')
        self.L.append(".text")
        self.L.append(f".globl {NAME}_kernel")
        self.L.append(".p2align 8")
        self.L.append(f".type {NAME}_kernel,@function")
        self.L.append(f"{NAME}_kernel:")

    def footer(self):
        self.L += [
            '.section .rodata,"a"',
            ".p2align 6",
            f".amdhsa_kernel {NAME}_kernel",
            "  .amdhsa_next_free_vgpr 512",
            "  .amdhsa_next_free_sgpr 102",
            "  .amdhsa_accum_offset 256",
            "  .amdhsa_group_segment_fixed_size 0",
            "  .amdhsa_kernarg_size 48",
            "  .amdhsa_user_sgpr_count 2",
            "  .amdhsa_user_sgpr_kernarg_segment_ptr 1",
            "  .amdhsa_system_sgpr_workgroup_id_x 1",
            ".end_amdhsa_kernel",
        ]

    def setup(self):
        e = self.e
        e("s_cmp_ge_u32 s2, 256")
        e("s_cbranch_scc1 L_end")
        e("s_load_dwordx4 s[4:7], s[0:1], 0")
        e("s_load_dwordx4 s[8:11], s[0:1], 16")
        if self.stamps:
            e(f"s_load_dwordx2 s[{sWS}:{sWS+1}], s[0:1], 40")
            e(f"s_memtime s[{sStamp+36}:{sStamp+37}]")
            self.stamp(0, False)
        e("v_lshrrev_b32 v1, 6, v0")
        e(f"v_and_b32 v{vLane}, 63, v0")
        e(f"v_readfirstlane_b32 s{sW}, v1")
        e(f"v_bfe_u32 v{vT0}, v{vLane}, 2, 2")
        e(f"v_lshlrev_b32 v{vDMA}, 8, v{vT0}")
        e(f"v_lshrrev_b32 v{vT0}, 4, v{vLane}")
        e(f"v_lshl_add_u32 v{vDMA}, v{vT0}, 6, v{vDMA}")
        e(f"v_and_b32 v{vT0}, 3, v{vLane}")
        e(f"v_lshl_add_u32 v{vDMA}, v{vT0}, 4, v{vDMA}")
        e(f"s_mul_i32 s{sWStr}, s{sW}, {WSTR}")
        e(f"s_mul_i32 s{sWbase}, s{sW}, {WREG}")
        e(f"s_add_u32 s{sWbase}, s{sWbase}, {W0}")
        e(f"s_mul_i32 s{sQCm0}, s{sW}, {QSTR}")
        e(f"s_add_u32 s{sQCm0}, s{sQCm0}, {QC}")
        e(f"s_mul_i32 s{sT0}, s2, 147456")
        e(f"s_lshl_b32 s{sT1}, s2, 18")
        e(f"s_mov_b32 s{sHead}, 0")
        e(f"s_mov_b32 s{sExact}, 0")
        e("s_waitcnt lgkmcnt(0)")
        for d, b, off, n in ((SRD_Q, 4, sT0, 147456), (SRD_K, 6, sT1, 262144), (SRD_V, 8, sT1, 262144 + 10240), (SRD_O, 10, sT0, 147456)):
            e(f"s_add_u32 s{d}, s{b}, s{off}")
            e(f"s_addc_u32 s{d+1}, s{b+1}, 0")
            if d == SRD_V:
                e(f"s_sub_u32 s{d}, s{d}, 10240")
                e(f"s_subb_u32 s{d+1}, s{d+1}, 0")
            e(f"s_mov_b32 s{d+2}, {n}")
            e(f"s_mov_b32 s{d+3}, 0x20000")

    def setup2(self):
        e = self.e
        e(f"s_mov_b32 s{sC}, {hex(f2u(128 ** -0.5 * 1.4426950408889634))}")
        e(f"s_mov_b32 s{sLim}, {hex(f2u(2.0 ** self.lim))}")
        h, r = vT1, vT2
        e(f"v_lshrrev_b32 v{h}, 5, v{vLane}")
        e(f"v_and_b32 v{r}, 31, v{vLane}")
        x = vX
        e(f"v_bfe_u32 v{vT0}, v{r}, 2, 1")
        e(f"v_lshlrev_b32 v{x}, 10, v{vT0}")
        e(f"v_and_b32 v{vT0}, 3, v{r}")
        e(f"v_lshl_add_u32 v{x}, v{vT0}, 6, v{x}")
        e(f"v_lshl_add_u32 v{x}, v{h}, 4, v{x}")
        e(f"v_lshrrev_b32 v{vT0}, 3, v{r}")
        e(f"v_mul_u32_u24 v{vKb}, {WSTR}, v{vT0}")
        e(f"v_add_u32 v{vKb}, v{vKb}, v{x}")
        e(f"v_mul_u32_u24 v{vQb}, {QSTR}, v{vT0}")
        e(f"v_add_u32 v{vQb}, v{vQb}, v{x}")
        e(f"v_add_u32 v{vQC}, {QC}, v{vQb}")
        e(f"v_add_u32 v{vQb}, s{sWbase}, v{vQb}")
        e(f"v_lshlrev_b32 v{vVb}, 10, v{h}")
        e(f"v_bfe_u32 v{vT0}, v{vLane}, 2, 2")
        e(f"v_lshl_add_u32 v{vVb}, v{vT0}, 6, v{vVb}")
        e(f"v_bfe_u32 v{vT0}, v{vLane}, 4, 1")
        e(f"v_lshl_add_u32 v{vVb}, v{vT0}, 5, v{vVb}")
        e(f"v_and_b32 v{vT0}, 1, v{vLane}")
        e(f"v_lshl_add_u32 v{vVb}, v{vT0}, 4, v{vVb}")
        e(f"v_bfe_u32 v{vT0}, v{vLane}, 1, 1")
        e(f"v_lshl_add_u32 v{vVb}, v{vT0}, 3, v{vVb}")
        e(f"v_mul_u32_u24 v{vStW}, 272, v{r}")
        e(f"v_lshl_add_u32 v{vStW}, v{h}, 4, v{vStW}")
        e(f"v_add_u32 v{vStW}, s{sWbase}, v{vStW}")
        e(f"v_mul_u32_u24 v{vCW}, 528, v{r}")
        e(f"v_lshl_add_u32 v{vCW}, v{h}, 4, v{vCW}")
        e(f"v_add_u32 v{vCW}, s{sWbase}, v{vCW}")
        e(f"v_lshlrev_b32 v{vMLW}, 5, v{r}")
        e(f"v_lshl_add_u32 v{vMLW}, v{h}, 2, v{vMLW}")
        e(f"s_lshl_b32 s{sT0}, s{sW}, 3")
        e(f"s_add_u32 s{sT1}, s{sT0}, {ML}")
        e(f"v_add_u32 v{vMLW}, s{sT1}, v{vMLW}")
        e(f"v_lshrrev_b32 v{h}, 4, v{vLane}")
        e(f"v_and_b32 v{r}, 15, v{vLane}")
        e(f"v_mul_u32_u24 v{vStR}, 272, v{h}")
        e(f"v_lshl_add_u32 v{vStR}, v{r}, 4, v{vStR}")
        e(f"v_add_u32 v{vStR}, s{sWbase}, v{vStR}")
        e(f"v_add_u32 v{h}, s{sT0}, v{h}")
        e(f"v_mul_u32_u24 v{vCR}, 528, v{h}")
        e(f"v_lshl_add_u32 v{vCR}, v{r}, 4, v{vCR}")
        e(f"v_add_u32 v{vCR}, {W0}, v{vCR}")
        e(f"v_lshlrev_b32 v{vMLR}, 5, v{h}")
        e(f"v_add_u32 v{vMLR}, {ML}, v{vMLR}")
        e(f"v_lshlrev_b32 v{vOst}, 4, v{vLane}")

    def cold(self):
        e = self.e
        e("L_cold:")
        e(f"s_lshl_b32 s{sOff}, s{sHead}, 17")
        e(f"s_lshl_b32 s{sT0}, s{sW}, 11")
        e(f"s_add_u32 s{sOff}, s{sOff}, s{sT0}")
        e(f"s_mov_b32 s{sRd}, {(NSTAGE-1)*STAGE}")
        e(f"s_add_u32 m0, s{sRd}, s{sWStr}")
        self.arm_q(sHead)
        e(self.dma(SRD_K, sOff, 0))
        e(self.dma(SRD_K, sOff, 1024))
        e(f"s_add_u32 s{sOff}, s{sOff}, 8192")
        e("L_coldq:")
        self.many(self.qpass())
        e(f"s_cmp_lg_u32 s{sQn}, 0")
        e("s_cbranch_scc1 L_coldq")
        for g in range(NSTAGE - 1):
            e(f"s_add_u32 m0, s{sWStr}, {g*STAGE}")
            e("s_nop 0")
            e(self.dma(SRD_K, sOff, 0))
            e(self.dma(SRD_K, sOff, 1024))
            e(self.dma(SRD_V, sOff, 2048))
            e(self.dma(SRD_V, sOff, 3072))
            e(f"s_add_u32 s{sOff}, s{sOff}, 8192")
        self.setup2()
        e(f"v_add_u32 v{vK}, s{sRd}, v{vKb}")
        e(f"s_mov_b32 s{sCold}, 1")
        e(f"s_waitcnt vmcnt({4*(NSTAGE-1)})")
        e("s_barrier")
        self.stamp(1, False)
        for X in "ABC":
            for ks in range(8):
                e(self.qread(X, ks))
        e(f"s_cmp_lg_u32 s{sExact}, 0")
        e("s_cbranch_scc1 L_prepass")
        e("L_prepass_ret:")
        for ks in range(8):
            e(self.kread(ks))
        e("s_waitcnt lgkmcnt(0)")

    def rowmax(self, X, dst, init=None):
        S = vS[X]
        ops = []
        if init is None:
            ops.append(f"v_max3_f32 v{dst}, v{S}, v{S+1}, v{S+2}")
            rest = list(range(3, 16))
        else:
            rest = list(range(16))
        while len(rest) >= 2:
            ops.append(f"v_max3_f32 v{dst}, v{dst}, v{S+rest[0]}, v{S+rest[1]}")
            rest = rest[2:]
        if rest:
            ops.append(f"v_max_f32 v{dst}, v{dst}, v{S+rest[0]}")
        return ops

    def crosshalf(self, op, reg, tmp):
        return [f"v_mov_b32 v{tmp}, v{reg}", "s_nop 1", f"v_permlane32_swap_b32 v{reg}, v{tmp}", f"{op} v{reg}, v{reg}, v{tmp}"]

    def prepass(self):
        e = self.e
        e("L_prepass:")
        e(f"v_and_b32 v{vT0}, 31, v{vLane}")
        e(f"v_lshlrev_b32 v{vT0}, 8, v{vT0}")
        e(f"v_lshrrev_b32 v{vT1}, 5, v{vLane}")
        e(f"v_lshl_add_u32 v{vT0}, v{vT1}, 4, v{vT0}")
        for X in "ABC":
            e(f"v_mov_b32 v{vM[X]}, 0xff800000")
        e(f"s_lshl_b32 s{sT0}, s{sHead}, 17")
        e(f"s_mov_b32 s{sT1}, 16")
        e("L_prepass_loop:")
        for ks in range(8):
            e(f"buffer_load_dwordx4 {ar(aK+4*ks,4)}, v{vT0}, s[{SRD_K}:{SRD_K+3}], s{sT0} offen offset:{ks*32}")
        e("s_waitcnt vmcnt(0) lgkmcnt(0)")
        for X in "ABC":
            for ks in range(8):
                e(self.qk(X, ks))
        e("s_nop 15")
        for X in "ABC":
            self.many(self.rowmax(X, vM[X], init=True))
        e(f"s_add_u32 s{sT0}, s{sT0}, 8192")
        e(f"s_sub_u32 s{sT1}, s{sT1}, 1")
        e(f"s_cmp_lg_u32 s{sT1}, 0")
        e("s_cbranch_scc1 L_prepass_loop")
        for X in "ABC":
            self.many(self.crosshalf("v_max_f32", vM[X], vT1))
            e(f"v_mul_f32 v{vM[X]}, s{sC}, v{vM[X]}")
        e("s_branch L_prepass_ret")

    def prologue(self):
        e = self.e
        e("L_prologue:")
        z = []
        for X in "AB":
            z += [f"v_mov_b64 {vr(vO[X]+2*i,2)}, 0" for i in range(32)]
        z += [f"v_accvgpr_write_b32 a{aOC+i}, 0" for i in range(64)]
        z += [f"v_accvgpr_write_b32 a{aV+i}, 0" for i in range(32)]
        z += [f"v_mov_b64 {vr(vP['B']+2*i,2)}, 0" for i in range(4)]
        z += [f"v_mov_b32 v{vL[X]}, 0" for X in "ABC"]
        per = (len(z) + 23) // 24
        for n, X in enumerate("BCA"):
            for ks in range(8):
                e(self.qk(X, ks))
                self.many(z[:per])
                z = z[per:]
        assert not z
        e(f"s_cmp_lg_u32 s{sExact}, 0")
        e("s_cbranch_scc1 L_havemax")
        for X in "BCA":
            self.many(self.rowmax(X, vM[X]))
        for X in "BCA":
            self.many(self.crosshalf("v_max_f32", vM[X], vT1))
            e(f"v_mul_f32 v{vM[X]}, s{sC}, v{vM[X]}")
        e("L_havemax:")
        e("s_nop 7")
        e(f"s_mov_b32 s{sT}, 15")
        e(f"s_mov_b32 s{sQn}, 0")
        e(f"s_cmp_lg_u32 s{sHead}, 0")
        e("s_cbranch_scc1 L_noarm")
        e(f"s_mov_b32 s{sT2}, 1")
        self.arm_q(sT2)
        e("L_noarm:")
        e(f"s_cmp_eq_u32 s{sCold}, 0")
        e("s_cbranch_scc1 L_warm")
        e(f"s_mov_b32 s{sCold}, 0")
        e(f"s_waitcnt vmcnt({4*(NSTAGE-2)})")
        e("s_barrier")
        e(f"s_cmp_eq_u32 s{sW}, 0")
        e("s_cbranch_scc1 L_warm")
        for grp in self.stage_ops():
            self.many(grp)
        e("L_warm:")
        self.stamp(2)
        e(f"s_cmp_eq_u32 s{sW}, 1")
        e("s_cbranch_scc1 L_sec3")
        e(f"s_cmp_eq_u32 s{sW}, 2")
        e("s_cbranch_scc1 L_sec2")
        e(f"s_cmp_eq_u32 s{sW}, 3")
        e("s_cbranch_scc1 L_sec1")

    def loop(self):
        e = self.e
        slots = [("A", "C", "B"), ("C", "B", "A"), ("B", "A", "C")] + [("A", "B", "B"), ("B", "A", "A")] * 3
        sec_start = {0: 0, 48: 1, 80: 2, 112: 3}
        N = 144
        mf, pre, post = [], [], []
        for sm, q, p in slots:
            mf += [self.qk(q, ks) for ks in range(8)] + [self.pv(p, f) for f in range(8)]
            for a, b in self.sm_gaps(sm):
                pre.append(list(a))
                post.append(list(b))
        mid = [[] for _ in range(N)]
        tail = [[] for _ in range(N)]
        barw = f"s_waitcnt vmcnt({4*(NSTAGE-2)}) lgkmcnt(0)"
        for i in range(16):
            mid[8 + i].append(self.vread(i))
        for ks in range(8):
            mid[24 + ks].append(self.kread(ks))
        tail[23].append("s_waitcnt lgkmcnt(4)")
        tail[29].append("s_waitcnt lgkmcnt(6)")
        tail[31].append("s_waitcnt lgkmcnt(4)")
        for P in (48, 80, 112):
            for ks in range(8):
                mid[P + ks].append(self.kread(ks))
            if P == 48:
                gaps = [8, 9, 10, 11, 11, 12, 13, 13, 14, 15, 15, 16, 17, 18, 19, 20]
            else:
                gaps = list(range(8, 24))
            for i, g in enumerate(gaps):
                assert g >= 8 + (i >> 1)
                mid[P + g].append(self.vread(i))
            tail[P + 15].append(f"s_waitcnt lgkmcnt({sum(1 for g in gaps if g <= 15)})")
            if P != 48:
                tail[P + 23].append("s_waitcnt lgkmcnt(4)")
            if P == 112:
                tail[P + 28].append("s_waitcnt lgkmcnt(0)")
        for b in (36, 72, 108, 144):
            tail[b - 1] += [barw, "s_barrier"]
        for b, step in ((0, 2), (36, 2), (72, 2), (108, 1)):
            for j, grp in enumerate(self.stage_ops()):
                mid[b + j * step] += grp
        for k, g in enumerate((7, 45, 79, 121)):
            tail[g] += [f"s_cmp_lg_u32 s{sQn}, 0", f"s_cbranch_scc1 L_qsnip{k}", f"L_qret{k}:"]
        for g in (47, 79, 111):
            tail[g] += [f"s_sub_u32 s{sT}, s{sT}, 1", "s_cbranch_scc1 L_exit"]
        tail[143] += [f"s_sub_u32 s{sT}, s{sT}, 1", "s_cbranch_scc0 L_sec0"]
        e(".p2align 6")
        for p in range(N):
            if p in sec_start:
                e(f"L_sec{sec_start[p]}:")
            e(mf[p])
            self.many(pre[p] + mid[p] + post[p] + tail[p])

    def snippets(self):
        for k in range(4):
            self.e(f"L_qsnip{k}:")
            self.many(self.qpass())
            self.e(f"s_branch L_qret{k}")

    def norm_block(self, X):
        e = self.e
        O = vO[X]
        base = 0 if X == "A" else 32 * 272
        r = vX + 30
        for c in range(8):
            t = vX + 4 * (c & 3)
            for i in range(4):
                e(f"v_pk_mul_f32 {vr(O+8*c+2*i,2)}, {vr(O+8*c+2*i,2)}, {vr(r,2)}")
            for i in range(4):
                e(f"v_cvt_pk_bf16_f32 v{t+i}, v{O+8*c+2*i}, v{O+8*c+2*i+1}")
            e(f"ds_write_b128 v{vStW}, {vr(t,4)} offset:{base+c*32}")

    def store_block(self, X, dst):
        e = self.e
        base = 0 if X == "A" else 32 * 272
        for j in range(8):
            e(f"ds_read_b128 {vr(dst+4*j,4)}, v{vStR} offset:{base+j*1088}")

    def store_issue(self, dst):
        e = self.e
        for j in range(8):
            if j == 4:
                e(f"s_add_u32 s{sOo}, s{sOo}, 4096")
            e(f"s_waitcnt lgkmcnt({7-j})")
            o = f" offset:{(j&3)*1024}" if j & 3 else ""
            e(f"buffer_store_dwordx4 {vr(dst+4*j,4)}, v{vOst}, s[{SRD_O}:{SRD_O+3}], s{sOo} offen{o} {self.st}")
        e(f"s_add_u32 s{sOo}, s{sOo}, 4096")

    def recip(self, X):
        r = vX + 30
        self.e(f"v_rcp_f32 v{r}, v{vL[X]}")
        self.e("s_nop 0")
        self.e(f"v_mov_b32 v{r+1}, v{r}")

    def epilogue(self):
        e = self.e
        e("L_exit:")
        self.stamp(3)
        fill = self.crosshalf("v_add_f32", vL["A"], vT1) + self.crosshalf("v_add_f32", vL["B"], vT1)
        fill += [
            f"v_cmp_ngt_f32 s[{sF}:{sF+1}], s{sLim}, v{vL['A']}",
            f"v_cmp_ngt_f32 s[{sF+2}:{sF+3}], s{sLim}, v{vL['B']}",
            f"v_cmp_ngt_f32 vcc, s{sLim}, v{vL['C']}",
            f"s_mul_i32 s{sOo}, s{sHead}, 73728",
            f"s_lshl_b32 s{sT0}, s{sW}, 14",
            f"s_add_u32 s{sOo}, s{sOo}, s{sT0}",
            f"s_or_b64 s[{sF}:{sF+1}], s[{sF}:{sF+1}], s[{sF+2}:{sF+3}]",
            f"s_or_b64 s[{sF}:{sF+1}], s[{sF}:{sF+1}], vcc",
            f"s_cselect_b32 s{sT1}, 1, 0",
            f"s_lshl_b32 s{sT0}, s{sW}, 2",
            f"s_add_u32 s{sT0}, s{sT0}, {FLAG}",
            f"v_mov_b32 v{vT0}, s{sT0}",
            f"v_mov_b32 v{vT1}, s{sT1}",
            f"ds_write_b32 v{vT0}, v{vT1}",
            f"ds_write_b32 v{vMLW}, v{vL['C']}",
        ]
        qr = [self.qread(X, ks) for X in "ABC" for ks in range(8)]
        for f in range(8):
            e(self.pv("B", f))
            self.many(fill[:3] + qr[:3])
            fill, qr = fill[3:], qr[3:]
        assert not fill and not qr
        self.recip("A")
        e("s_waitcnt lgkmcnt(0)")
        self.norm_block("A")
        dA, dB = vS["A"], vS["C"]
        self.store_block("A", dA)
        self.recip("B")
        self.store_issue(dA)
        self.norm_block("B")
        self.store_block("B", dB)
        self.store_issue(dB)
        self.stamp(4)
        for db in range(4):
            for hi in range(2):
                for lo in range(2):
                    e(f"ds_write_b128 v{vCW}, {ar(aOC+16*db+8*hi+4*lo,4)} offset:{lo*256+(4*db+2*hi)*16}")
        e("s_waitcnt lgkmcnt(0)")
        e("s_barrier")
        e(f"v_mov_b32 v{vT0}, {FLAG}")
        e(f"ds_read_b128 {vr(vX,4)}, v{vT0}")
        for j in range(2):
            for x in range(2):
                e(f"ds_read_b128 {vr(vX+4+8*j+4*x,4)}, v{vMLR} offset:{j*128+x*16}")
        R = vO["A"]
        for j in range(2):
            for w in range(4):
                for lo in range(2):
                    e(f"ds_read_b128 {vr(R+32*j+8*w+4*lo,4)}, v{vCR} offset:{w*WREG+j*4*528+lo*256}")
            if j == 0:
                e("s_waitcnt lgkmcnt(8)")
                e(f"v_or3_b32 v{vX}, v{vX}, v{vX+1}, v{vX+2}")
                e(f"v_or_b32 v{vX}, v{vX}, v{vX+3}")
                for jj in range(2):
                    b = vX + 4 + 8 * jj
                    e(f"v_pk_add_f32 {vr(b,2)}, {vr(b,2)}, {vr(b+2,2)}")
                    e(f"v_pk_add_f32 {vr(b+4,2)}, {vr(b+4,2)}, {vr(b+6,2)}")
                    e(f"v_pk_add_f32 {vr(b,2)}, {vr(b,2)}, {vr(b+4,2)}")
                    e(f"v_add_f32 v{b}, v{b}, v{b+1}")
                    e(f"v_rcp_f32 v{b}, v{b}")
                    e("s_nop 0")
                    e(f"v_mov_b32 v{b+1}, v{b}")
                e(f"v_readfirstlane_b32 s{sT2}, v{vX}")
        e(f"s_mul_i32 s{sOo}, s{sHead}, 73728")
        e(f"s_lshl_b32 s{sT0}, s{sW}, 11")
        e(f"s_add_u32 s{sOo}, s{sOo}, s{sT0}")
        e(f"s_add_u32 s{sOo}, s{sOo}, 65536")
        for j in range(2):
            e(f"s_waitcnt lgkmcnt({8*(1-j)})")
            b = R + 32 * j
            for i in range(4):
                e(f"v_pk_add_f32 {vr(b+2*i,2)}, {vr(b+2*i,2)}, {vr(b+8+2*i,2)}")
                e(f"v_pk_add_f32 {vr(b+16+2*i,2)}, {vr(b+16+2*i,2)}, {vr(b+24+2*i,2)}")
            for i in range(4):
                e(f"v_pk_add_f32 {vr(b+2*i,2)}, {vr(b+2*i,2)}, {vr(b+16+2*i,2)}")
            for i in range(4):
                e(f"v_pk_mul_f32 {vr(b+2*i,2)}, {vr(b+2*i,2)}, {vr(vX+4+8*j,2)}")
            t = vX + 20 + 4 * j
            for i in range(4):
                e(f"v_cvt_pk_bf16_f32 v{t+i}, v{b+2*i}, v{b+2*i+1}")
            o = f" offset:{j*1024}" if j else ""
            e(f"buffer_store_dwordx4 {vr(t,4)}, v{vOst}, s[{SRD_O}:{SRD_O+3}], s{sOo} offen{o} {self.st}")
        self.stamp(5)
        e(f"s_andn2_b32 s{sT2}, s{sT2}, s{sExact}")
        e("s_cbranch_scc1 L_redo")
        e(f"s_mov_b32 s{sExact}, 0")
        e(f"s_add_u32 s{sHead}, s{sHead}, 1")
        e(f"s_cmp_lt_u32 s{sHead}, 2")
        e("s_cbranch_scc1 L_prologue")
        if self.stamps:
            e("s_waitcnt vmcnt(0)")
            self.stamp(12, False)
            e(f"s_memtime s[{sStamp+38}:{sStamp+39}]")
            e("s_waitcnt lgkmcnt(0)")
            e(f"s_mov_b32 s{sWS+2}, 0x100000")
            e(f"s_mov_b32 s{sWS+3}, 0x20000")
            e(f"v_mov_b32 v{vX}, 0")
            for i in range(20):
                e(f"v_writelane_b32 v{vX}, s{sStamp+2*i}, {i}")
            e(f"s_lshl_b32 s{sT0}, s2, 2")
            e(f"s_add_u32 s{sT0}, s{sT0}, s{sW}")
            e(f"s_lshl_b32 s{sT0}, s{sT0}, 8")
            e(f"v_lshlrev_b32 v{vT0}, 2, v{vLane}")
            e(f"buffer_store_dword v{vX}, v{vT0}, s[{sWS}:{sWS+3}], s{sT0} offen")
        e("L_end:")
        e("s_endpgm")
        e("L_redo:")
        e(f"s_mov_b32 s{sExact}, 1")
        e("s_waitcnt vmcnt(0) lgkmcnt(0)")
        e("s_barrier")
        e("s_branch L_cold")

    def build(self):
        self.header()
        self.setup()
        self.cold()
        self.prologue()
        self.loop()
        self.epilogue()
        self.snippets()
        self.prepass()
        self.footer()
        return "\n".join(self.L) + "\n"


if __name__ == "__main__":
    out = sys.argv[1] if len(sys.argv) > 1 else f"cdna_kernels/{NAME}.s"
    kw = {}
    for a in sys.argv[2:]:
        k, v = a.split("=")
        kw[k] = int(v) if v.lstrip("-").isdigit() else v.replace("_", " ")
    open(out, "w").write(Gen(**kw).build())
```

```python
import struct
import sys

NAME = "standalone__mha_softmax__near_ridge"

WSTR = 4112
STAGE = 4 * WSTR
NSTAGE = 5
RING = NSTAGE * STAGE
WREG = 17408
W0 = RING
QSTR = 2064
QUNIT = 4 * QSTR
QC = W0 + 4 * WREG
ML = QC + QUNIT
FLAG = ML + 1024
LDS_BYTES = FLAG + 64
assert LDS_BYTES <= 163840

sW = 3
SRD_Q, SRD_K, SRD_V, SRD_O = 12, 16, 20, 24
sC, sRd, sOff, sWStr, sT, sHead, sExact = 28, 29, 30, 31, 32, 33, 34
sQn, sQm0, sQoff, sQCm0, sQCoff, sWbase = 35, 36, 37, 38, 39, 40
sT0, sT1, sT2, sLim, sCold, sOo = 41, 42, 43, 44, 45, 46
sF = 48
sWS = 52
sStamp = 60

vLane, vDMA, vKb, vVb, vK, vV, vQb = 0, 1, 2, 3, 4, 5, 6
vM = {"A": 7, "B": 8, "C": 9}
vL = {"A": 10, "B": 11, "C": 12}
vT0, vT1, vT2 = 13, 14, 15
vS = {"A": 16, "B": 32, "C": 48}
vP = {"A": 64, "B": 72, "C": 80}
vStW, vStR, vCW, vCR, vMLW, vMLR, vOst, vQC = 88, 89, 90, 91, 92, 93, 94, 95
vO = {"A": 96, "B": 160}
vX = 224
aOC = 0
aQ = {"A": 64, "B": 96, "C": 128}
aK = 160
aV = 192


def f2u(x):
    return struct.unpack("<I", struct.pack("<f", x))[0]


def vr(b, n=1):
    return f"v{b}" if n == 1 else f"v[{b}:{b+n-1}]"


def ar(b, n=1):
    return f"a{b}" if n == 1 else f"a[{b}:{b+n-1}]"


def oreg(X, db):
    return ar(aOC + 16 * db, 16) if X == "C" else vr(vO[X] + 16 * db, 16)


def isize(op):
    if op.endswith(":"):
        return 0
    m = op.split()[0]
    args = [a.strip() for a in op[len(m):].split(",")]
    if m.endswith("_e64") or m.startswith(("v_mfma", "ds_", "buffer_", "v_fma", "v_cvt_pk", "v_pk_", "v_accvgpr", "v_max3", "v_lshl_add", "v_perm", "s_mem", "v_or3", "v_and_or", "v_bfe", "v_writelane")):
        return 8
    if m.startswith(("s_waitcnt", "s_barrier", "s_cbranch", "s_branch", "s_nop", "s_setprio")):
        return 4
    for a in args:
        try:
            v = int(a, 0)
        except ValueError:
            continue
        if not -16 <= v <= 64:
            return 8
    return 4


def align8(ops):
    out, run = [], []

    def flush():
        if sum(isize(o) for o in run) % 8:
            for i, o in enumerate(run):
                m = o.split()[0]
                if m in ("v_exp_f32", "v_add_f32", "v_add_u32", "v_mul_f32", "v_mov_b32", "v_lshlrev_b32", "v_and_b32", "v_max_f32"):
                    run[i] = m + "_e64" + o[len(m):]
                    break
            else:
                run.append("s_nop 0")
        out.extend(run)
        run.clear()

    for o in ops:
        if isize(o) == 8:
            flush()
            out.append(o)
        else:
            run.append(o)
    flush()
    return out


class Gen:
    def __init__(self, ld="nt", st="sc0 sc1", stamps=False, lim=30, **opt):
        self.L = []
        self.ld = ld
        self.st = st
        self.stamps = stamps
        self.lim = lim
        self.opt = opt or {}
        self.nstamp = 0
        self.clk = "s_memtime" if stamps == 2 else "s_memrealtime"

    def e(self, s):
        self.L.append(s if s.endswith(":") else "    " + s)

    def many(self, lst):
        for s in lst:
            self.e(s)

    def stamp(self, idx, perhead=True):
        if not self.stamps:
            return
        if perhead:
            lab = f"L_st{self.nstamp}"
            self.nstamp += 1
            self.e(f"s_cmp_eq_u32 s{sHead}, 0")
            self.e(f"s_cbranch_scc1 {lab}a")
            self.e(f"{self.clk} s[{sStamp+2*(idx+6)}:{sStamp+2*(idx+6)+1}]")
            self.e(f"s_branch {lab}b")
            self.e(f"{lab}a:")
            self.e(f"{self.clk} s[{sStamp+2*idx}:{sStamp+2*idx+1}]")
            self.e(f"{lab}b:")
        else:
            self.e(f"{self.clk} s[{sStamp+2*idx}:{sStamp+2*idx+1}]")
        self.e("s_waitcnt lgkmcnt(0)")

    def qk(self, X, ks):
        c = "0" if ks == 0 else vr(vS[X], 16)
        return f"v_mfma_f32_32x32x16_bf16 {vr(vS[X],16)}, {ar(aK+4*ks,4)}, {ar(aQ[X]+4*ks,4)}, {c}"

    def pv(self, X, f):
        db, kk = f >> 1, f & 1
        o = oreg(X, db)
        return f"v_mfma_f32_32x32x16_bf16 {o}, {ar(aV+4*f,4)}, {vr(vP[X]+4*kk,4)}, {o}"

    def qk16(self, X, f):
        kt, ks = f >> 2, f & 3
        r = []
        for qt in range(2):
            d = vr(vS[X] + 8 * qt + 4 * kt, 4)
            r.append(f"v_mfma_f32_16x16x32_bf16 {d}, {ar(aK+4*f,4)}, {ar(aQ[X]+16*qt+4*ks,4)}, {'0' if ks == 0 else d}")
        return r

    def pv16(self, X, f):
        r = []
        for qt in range(2):
            o = ar(aOC + 8 * f + 4 * qt, 4) if X == "C" else vr(vO[X] + 8 * f + 4 * qt, 4)
            r.append(f"v_mfma_f32_16x16x32_bf16 {o}, {ar(aV+4*f,4)}, {vr(vP[X]+4*qt,4)}, {o}")
        return r

    def kread(self, ks, addr=vK):
        return f"ds_read_b128 {ar(aK+4*ks,4)}, v{addr} offset:{(ks>>1)*256+(ks&1)*32}"

    def vread(self, i):
        f, s = i >> 1, i & 1
        db, kk = f >> 1, f & 1
        return f"ds_read_b64_tr_b16 {ar(aV+4*f+2*s,2)}, v{vV} offset:{2048+(2*kk+s)*WSTR+db*256}"

    def qread(self, X, ks):
        addr, base = (vQC, 0) if X == "C" else (vQb, 0 if X == "A" else QUNIT)
        return f"ds_read_b128 {ar(aQ[X]+4*ks,4)}, v{addr} offset:{base+(ks>>1)*256+(ks&1)*32}"

    def dma(self, srd, soff, off):
        o = f" offset:{off}" if off else ""
        return f"buffer_load_dwordx4 v{vDMA}, s[{srd}:{srd+3}], s{soff} offen{o} {self.ld} lds"

    def stage_ops(self):
        return [
            [f"s_add_u32 m0, s{sRd}, s{sWStr}", f"s_add_u32 s{sRd}, s{sRd}, {STAGE}", self.dma(SRD_K, sOff, 0)],
            [f"s_cmp_eq_u32 s{sRd}, {RING}", f"s_cselect_b32 s{sRd}, 0, s{sRd}", self.dma(SRD_K, sOff, 1024)],
            [f"v_add_u32 v{vK}, s{sRd}, v{vKb}", self.dma(SRD_V, sOff, 2048)],
            [f"v_add_u32 v{vV}, s{sRd}, v{vVb}", self.dma(SRD_V, sOff, 3072), f"s_add_u32 s{sOff}, s{sOff}, 8192"],
        ]

    def qpass(self):
        return [
            f"s_mov_b32 m0, s{sQm0}",
            f"s_sub_u32 s{sQn}, s{sQn}, 1",
            self.dma(SRD_Q, sQoff, 0),
            self.dma(SRD_Q, sQoff, 1024),
            f"s_add_u32 s{sQm0}, s{sQm0}, {QSTR}",
            f"s_add_u32 s{sQoff}, s{sQoff}, 2048",
            f"s_cmp_eq_u32 s{sQn}, 1",
            f"s_cselect_b32 s{sQm0}, s{sQCm0}, s{sQm0}",
            f"s_cselect_b32 s{sQoff}, s{sQCoff}, s{sQoff}",
        ]

    def arm_q(self, head_sreg):
        e = self.e
        e(f"s_mul_i32 s{sT0}, s{head_sreg}, 73728")
        e(f"s_lshl_b32 s{sT1}, s{sW}, 14")
        e(f"s_add_u32 s{sQoff}, s{sT0}, s{sT1}")
        e(f"s_lshl_b32 s{sT1}, s{sW}, 11")
        e(f"s_add_u32 s{sQCoff}, s{sT0}, s{sT1}")
        e(f"s_add_u32 s{sQCoff}, s{sQCoff}, 65536")
        e(f"s_mov_b32 s{sQm0}, s{sWbase}")
        e(f"s_mov_b32 s{sQn}, 9")

    def sm_gaps(self, X):
        S, P, m, l = vS[X], vP[X], vM[X], vL[X]
        fma = lambda i: f"v_fma_f32 v{S+i}, v{S+i}, s{sC}, -v{m}"
        ex = lambda i: f"v_exp_f32 v{S+i}, v{S+i}"
        add = lambda i: f"v_add_f32 v{l}, v{l}, v{S+i}"
        cvt = lambda j: f"v_cvt_pk_bf16_f32 v{P+j}, v{S+2*j}, v{S+2*j+1}"
        g = []
        for i in range(16):
            pre, post = [], []
            if i == 0:
                pre += [fma(0), fma(1)]
                post += [ex(0)]
            elif i < 15:
                pre += [fma(i + 1)]
                if i % 2 == 0:
                    post += [cvt(i // 2 - 1)]
                post += [ex(i), add(i - 1)]
            else:
                pre += [ex(15), add(14)]
                post += [cvt(7), add(15)]
            g.append((pre, post))
        return g

    def header(self):
        ref = open(f"cdna_kernels/{NAME}.s.ref").read().split("\n")
        for line in ref:
            if line.startswith("; @launch"):
                break
            self.L.append(line)
        self.L.append(f"; @launch grid=(256,1,1) block=(256,1,1) lds={LDS_BYTES}")
        self.L.append('.amdgcn_target "amdgcn-amd-amdhsa--gfx950"')
        self.L.append(".text")
        self.L.append(f".globl {NAME}_kernel")
        self.L.append(".p2align 8")
        self.L.append(f".type {NAME}_kernel,@function")
        self.L.append(f"{NAME}_kernel:")

    def footer(self):
        self.L += [
            '.section .rodata,"a"',
            ".p2align 6",
            f".amdhsa_kernel {NAME}_kernel",
            "  .amdhsa_next_free_vgpr 512",
            "  .amdhsa_next_free_sgpr 102",
            "  .amdhsa_accum_offset 256",
            "  .amdhsa_group_segment_fixed_size 0",
            "  .amdhsa_kernarg_size 48",
            "  .amdhsa_user_sgpr_count 2",
            "  .amdhsa_user_sgpr_kernarg_segment_ptr 1",
            "  .amdhsa_system_sgpr_workgroup_id_x 1",
            ".end_amdhsa_kernel",
        ]

    def setup(self):
        e = self.e
        e("s_cmp_ge_u32 s2, 256")
        e("s_cbranch_scc1 L_end")
        e("s_load_dwordx4 s[4:7], s[0:1], 0")
        e("s_load_dwordx4 s[8:11], s[0:1], 16")
        if self.stamps:
            e(f"s_load_dwordx2 s[{sWS}:{sWS+1}], s[0:1], 40")
            e(f"s_memtime s[{sStamp+36}:{sStamp+37}]")
            self.stamp(0, False)
        e("v_lshrrev_b32 v1, 6, v0")
        e(f"v_and_b32 v{vLane}, 63, v0")
        e(f"v_readfirstlane_b32 s{sW}, v1")
        e(f"v_bfe_u32 v{vT0}, v{vLane}, 2, 2")
        e(f"v_lshlrev_b32 v{vDMA}, 8, v{vT0}")
        e(f"v_lshrrev_b32 v{vT0}, 4, v{vLane}")
        e(f"v_lshl_add_u32 v{vDMA}, v{vT0}, 6, v{vDMA}")
        e(f"v_and_b32 v{vT0}, 3, v{vLane}")
        e(f"v_lshl_add_u32 v{vDMA}, v{vT0}, 4, v{vDMA}")
        e(f"s_mul_i32 s{sWStr}, s{sW}, {WSTR}")
        e(f"s_mul_i32 s{sWbase}, s{sW}, {WREG}")
        e(f"s_add_u32 s{sWbase}, s{sWbase}, {W0}")
        e(f"s_mul_i32 s{sQCm0}, s{sW}, {QSTR}")
        e(f"s_add_u32 s{sQCm0}, s{sQCm0}, {QC}")
        e(f"s_mul_i32 s{sT0}, s2, 147456")
        e(f"s_lshl_b32 s{sT1}, s2, 18")
        e(f"s_mov_b32 s{sHead}, 0")
        if self.stamps == 3:
            e("s_mov_b32 s47, 0")
        e(f"s_mov_b32 s{sExact}, 0")
        e("s_waitcnt lgkmcnt(0)")
        for d, b, off, n in ((SRD_Q, 4, sT0, 147456), (SRD_K, 6, sT1, 262144), (SRD_V, 8, sT1, 262144 + 10240), (SRD_O, 10, sT0, 147456)):
            e(f"s_add_u32 s{d}, s{b}, s{off}")
            e(f"s_addc_u32 s{d+1}, s{b+1}, 0")
            if d == SRD_V:
                e(f"s_sub_u32 s{d}, s{d}, 10240")
                e(f"s_subb_u32 s{d+1}, s{d+1}, 0")
            e(f"s_mov_b32 s{d+2}, {0 if self.opt.get('oob') and d in (SRD_K, SRD_V) else n}")
            e(f"s_mov_b32 s{d+3}, 0x20000")

    def setup2(self):
        e = self.e
        e(f"s_mov_b32 s{sC}, {hex(f2u(128 ** -0.5 * 1.4426950408889634))}")
        e(f"s_mov_b32 s{sLim}, {hex(f2u(2.0 ** self.lim))}")
        h, r = vT1, vT2
        e(f"v_lshrrev_b32 v{h}, 5, v{vLane}")
        e(f"v_and_b32 v{r}, 31, v{vLane}")
        x = vX
        e(f"v_bfe_u32 v{vT0}, v{r}, 2, 1")
        e(f"v_lshlrev_b32 v{x}, 10, v{vT0}")
        e(f"v_and_b32 v{vT0}, 3, v{r}")
        e(f"v_lshl_add_u32 v{x}, v{vT0}, 6, v{x}")
        e(f"v_lshl_add_u32 v{x}, v{h}, 4, v{x}")
        e(f"v_lshrrev_b32 v{vT0}, 3, v{r}")
        e(f"v_mul_u32_u24 v{vKb}, {WSTR}, v{vT0}")
        e(f"v_add_u32 v{vKb}, v{vKb}, v{x}")
        e(f"v_mul_u32_u24 v{vQb}, {QSTR}, v{vT0}")
        e(f"v_add_u32 v{vQb}, v{vQb}, v{x}")
        e(f"v_add_u32 v{vQC}, {QC}, v{vQb}")
        e(f"v_add_u32 v{vQb}, s{sWbase}, v{vQb}")
        e(f"v_lshlrev_b32 v{vVb}, 10, v{h}")
        e(f"v_bfe_u32 v{vT0}, v{vLane}, 2, 2")
        e(f"v_lshl_add_u32 v{vVb}, v{vT0}, 6, v{vVb}")
        e(f"v_bfe_u32 v{vT0}, v{vLane}, 4, 1")
        e(f"v_lshl_add_u32 v{vVb}, v{vT0}, 5, v{vVb}")
        e(f"v_and_b32 v{vT0}, 1, v{vLane}")
        e(f"v_lshl_add_u32 v{vVb}, v{vT0}, 4, v{vVb}")
        e(f"v_bfe_u32 v{vT0}, v{vLane}, 1, 1")
        e(f"v_lshl_add_u32 v{vVb}, v{vT0}, 3, v{vVb}")
        e(f"v_mul_u32_u24 v{vStW}, 272, v{r}")
        e(f"v_lshl_add_u32 v{vStW}, v{h}, 4, v{vStW}")
        e(f"v_add_u32 v{vStW}, s{sWbase}, v{vStW}")
        e(f"v_mul_u32_u24 v{vCW}, 528, v{r}")
        e(f"v_lshl_add_u32 v{vCW}, v{h}, 4, v{vCW}")
        e(f"v_add_u32 v{vCW}, s{sWbase}, v{vCW}")
        e(f"v_lshlrev_b32 v{vMLW}, 5, v{r}")
        e(f"v_lshl_add_u32 v{vMLW}, v{h}, 2, v{vMLW}")
        e(f"s_lshl_b32 s{sT0}, s{sW}, 3")
        e(f"s_add_u32 s{sT1}, s{sT0}, {ML}")
        e(f"v_add_u32 v{vMLW}, s{sT1}, v{vMLW}")
        e(f"v_lshrrev_b32 v{h}, 4, v{vLane}")
        e(f"v_and_b32 v{r}, 15, v{vLane}")
        e(f"v_mul_u32_u24 v{vStR}, 272, v{h}")
        e(f"v_lshl_add_u32 v{vStR}, v{r}, 4, v{vStR}")
        e(f"v_add_u32 v{vStR}, s{sWbase}, v{vStR}")
        e(f"v_add_u32 v{h}, s{sT0}, v{h}")
        e(f"v_mul_u32_u24 v{vCR}, 528, v{h}")
        e(f"v_lshl_add_u32 v{vCR}, v{r}, 4, v{vCR}")
        e(f"v_add_u32 v{vCR}, {W0}, v{vCR}")
        e(f"v_lshlrev_b32 v{vMLR}, 5, v{h}")
        e(f"v_add_u32 v{vMLR}, {ML}, v{vMLR}")
        e(f"v_lshlrev_b32 v{vOst}, 4, v{vLane}")
        if self.opt.get("sum"):
            e(f"v_mov_b32 v{vT0}, 0x3f803f80")
            if self.opt.get("sum") == 2:
                e(f"v_cmp_eq_u32 vcc, 0, v{r}")
                e(f"v_cndmask_b32 v{vT0}, 0, v{vT0}, vcc")
            for i in range(4):
                e(f"v_accvgpr_write_b32 a{248+i}, v{vT0}")
            for i in range(24):
                e(f"v_accvgpr_write_b32 a{224+i}, 0")

    def cold(self):
        e = self.e
        e("L_cold:")
        e(f"s_lshl_b32 s{sOff}, s{sHead}, 17")
        e(f"s_lshl_b32 s{sT0}, s{sW}, 11")
        e(f"s_add_u32 s{sOff}, s{sOff}, s{sT0}")
        e(f"s_mov_b32 s{sRd}, {(NSTAGE-1)*STAGE}")
        e(f"s_add_u32 m0, s{sRd}, s{sWStr}")
        self.arm_q(sHead)
        e(self.dma(SRD_K, sOff, 0))
        e(self.dma(SRD_K, sOff, 1024))
        e(f"s_add_u32 s{sOff}, s{sOff}, 8192")
        e("L_coldq:")
        self.many(self.qpass())
        e(f"s_cmp_lg_u32 s{sQn}, 0")
        e("s_cbranch_scc1 L_coldq")
        for g in range(NSTAGE - 1):
            e(f"s_add_u32 m0, s{sWStr}, {g*STAGE}")
            e("s_nop 0")
            e(self.dma(SRD_K, sOff, 0))
            e(self.dma(SRD_K, sOff, 1024))
            e(self.dma(SRD_V, sOff, 2048))
            e(self.dma(SRD_V, sOff, 3072))
            e(f"s_add_u32 s{sOff}, s{sOff}, 8192")
        self.setup2()
        e(f"v_add_u32 v{vK}, s{sRd}, v{vKb}")
        e(f"s_mov_b32 s{sCold}, 1")
        e(f"s_waitcnt vmcnt({4*(NSTAGE-1)})")
        e("s_barrier")
        self.stamp(1, False)
        for X in "ABC":
            for ks in range(8):
                e(self.qread(X, ks))
        e(f"s_cmp_lg_u32 s{sExact}, 0")
        e("s_cbranch_scc1 L_prepass")
        e("L_prepass_ret:")
        for ks in range(8):
            e(self.kread(ks))
        e("s_waitcnt lgkmcnt(0)")

    def rowmax(self, X, dst, init=None):
        S = vS[X]
        ops = []
        if init is None:
            ops.append(f"v_max3_f32 v{dst}, v{S}, v{S+1}, v{S+2}")
            rest = list(range(3, 16))
        else:
            rest = list(range(16))
        while len(rest) >= 2:
            ops.append(f"v_max3_f32 v{dst}, v{dst}, v{S+rest[0]}, v{S+rest[1]}")
            rest = rest[2:]
        if rest:
            ops.append(f"v_max_f32 v{dst}, v{dst}, v{S+rest[0]}")
        return ops

    def crosshalf(self, op, reg, tmp):
        return [f"v_mov_b32 v{tmp}, v{reg}", "s_nop 1", f"v_permlane32_swap_b32 v{reg}, v{tmp}", f"{op} v{reg}, v{reg}, v{tmp}"]

    def prepass(self):
        e = self.e
        e("L_prepass:")
        e(f"v_and_b32 v{vT0}, 31, v{vLane}")
        e(f"v_lshlrev_b32 v{vT0}, 8, v{vT0}")
        e(f"v_lshrrev_b32 v{vT1}, 5, v{vLane}")
        e(f"v_lshl_add_u32 v{vT0}, v{vT1}, 4, v{vT0}")
        for X in "ABC":
            e(f"v_mov_b32 v{vM[X]}, 0xff800000")
        e(f"s_lshl_b32 s{sT0}, s{sHead}, 17")
        e(f"s_mov_b32 s{sT1}, 16")
        e("L_prepass_loop:")
        for ks in range(8):
            e(f"buffer_load_dwordx4 {ar(aK+4*ks,4)}, v{vT0}, s[{SRD_K}:{SRD_K+3}], s{sT0} offen offset:{ks*32}")
        e("s_waitcnt vmcnt(0) lgkmcnt(0)")
        for X in "ABC":
            for ks in range(8):
                e(self.qk(X, ks))
        e("s_nop 15")
        for X in "ABC":
            self.many(self.rowmax(X, vM[X], init=True))
        e(f"s_add_u32 s{sT0}, s{sT0}, 8192")
        e(f"s_sub_u32 s{sT1}, s{sT1}, 1")
        e(f"s_cmp_lg_u32 s{sT1}, 0")
        e("s_cbranch_scc1 L_prepass_loop")
        for X in "ABC":
            self.many(self.crosshalf("v_max_f32", vM[X], vT1))
            e(f"v_mul_f32 v{vM[X]}, s{sC}, v{vM[X]}")
        e("s_branch L_prepass_ret")

    def prologue(self):
        e = self.e
        e("L_prologue:")
        z = []
        for X in "AB":
            z += [f"v_mov_b64 {vr(vO[X]+2*i,2)}, 0" for i in range(32)]
        z += [f"v_accvgpr_write_b32 a{aOC+i}, 0" for i in range(64)]
        z += [f"v_accvgpr_write_b32 a{aV+i}, 0" for i in range(32)]
        z += [f"v_mov_b64 {vr(vP['B']+2*i,2)}, 0" for i in range(4)]
        z += [f"v_mov_b32 v{vL[X]}, 0" for X in "ABC"]
        per = (len(z) + 23) // 24
        for n, X in enumerate("BCA"):
            for ks in range(8):
                e(self.qk(X, ks))
                self.many(z[:per])
                z = z[per:]
        assert not z
        e(f"s_cmp_lg_u32 s{sExact}, 0")
        e("s_cbranch_scc1 L_havemax")
        for X in "BCA":
            self.many(self.rowmax(X, vM[X]))
        for X in "BCA":
            self.many(self.crosshalf("v_max_f32", vM[X], vT1))
            e(f"v_mul_f32 v{vM[X]}, s{sC}, v{vM[X]}")
        e("L_havemax:")
        e("s_nop 7")
        e(f"s_mov_b32 s{sT}, 15")
        e(f"s_mov_b32 s{sQn}, 0")
        e(f"s_cmp_lg_u32 s{sHead}, 0")
        e("s_cbranch_scc1 L_noarm")
        e(f"s_mov_b32 s{sT2}, 1")
        self.arm_q(sT2)
        e("L_noarm:")
        e(f"s_cmp_eq_u32 s{sCold}, 0")
        e("s_cbranch_scc1 L_warm")
        e(f"s_mov_b32 s{sCold}, 0")
        e(f"s_waitcnt vmcnt({4*(NSTAGE-2)})")
        e("s_barrier")
        e(f"s_cmp_eq_u32 s{sW}, 0")
        e("s_cbranch_scc1 L_warm")
        for grp in self.stage_ops():
            self.many(grp)
        e("L_warm:")
        self.stamp(2)
        e(f"s_cmp_eq_u32 s{sW}, 1")
        e("s_cbranch_scc1 L_sec3")
        e(f"s_cmp_eq_u32 s{sW}, 2")
        e("s_cbranch_scc1 L_sec2")
        e(f"s_cmp_eq_u32 s{sW}, 3")
        e("s_cbranch_scc1 L_sec1")

    def loop(self):
        e = self.e
        slots = [("A", "C", "B"), ("C", "B", "A"), ("B", "A", "C")] + [("A", "B", "B"), ("B", "A", "A")] * 3
        sec_start = {0: 0, 48: 1, 80: 2, 112: 3}
        N = 144
        mf, pre, post = [], [], []
        for sm, q, p in slots:
            if self.opt.get("m16"):
                Q = [self.qk16(q, ks) for ks in range(8)]
                Pv = [self.pv16(p, f) for f in range(8)]
                oq, op = self.opt.get("oq", 0), self.opt.get("op", 0)
                if oq == 1:
                    l = [Q[4 * kt + ks][qt] for qt in range(2) for ks in range(4) for kt in range(2)]
                elif oq == 2:
                    l = [Q[4 * kt + ks][qt] for kt in range(2) for qt in range(2) for ks in range(4)]
                elif oq == 3:
                    l = [Q[4 * kt + ks][qt ^ kt] for ks in range(4) for kt in range(2) for qt in range(2)]
                else:
                    l = sum(Q, [])
                if op == 1:
                    l += [Pv[f][qt] for qt in range(2) for f in range(8)]
                elif op == 3:
                    l += [Pv[f][qt ^ (f & 1)] for f in range(8) for qt in range(2)]
                else:
                    l += sum(Pv, [])
                mf += [l[2 * i:2 * i + 2] for i in range(16)]
            else:
                mf += [self.qk(q, ks) for ks in range(8)] + [self.pv(p, f) for f in range(8)]
            for a, b in self.sm_gaps(sm):
                pre.append(list(a))
                post.append(list(b))
        mid = [[] for _ in range(N)]
        tail = [[] for _ in range(N)]
        barw = f"s_waitcnt vmcnt({4*(NSTAGE-2)}) lgkmcnt(0)"
        for i in range(16):
            mid[8 + i].append(self.vread(i))
        for ks in range(8):
            mid[24 + ks].append(self.kread(ks))
        tail[23].append("s_waitcnt lgkmcnt(4)")
        tail[29].append("s_waitcnt lgkmcnt(6)")
        tail[31].append("s_waitcnt lgkmcnt(4)")
        for P in (48, 80, 112):
            for ks in range(8):
                mid[P + ks].append(self.kread(ks))
            if P == 48:
                gaps = [8, 9, 10, 11, 11, 12, 13, 13, 14, 15, 15, 16, 17, 18, 19, 20]
            else:
                gaps = list(range(8, 24))
            for i, g in enumerate(gaps):
                assert g >= 8 + (i >> 1)
                mid[P + g].append(self.vread(i))
            tail[P + 15].append(f"s_waitcnt lgkmcnt({sum(1 for g in gaps if g <= 15)})")
            if P != 48:
                tail[P + 23].append("s_waitcnt lgkmcnt(4)")
            if P == 112:
                tail[P + 28].append("s_waitcnt lgkmcnt(0)")
        for b in (36, 72, 108, 144):
            if self.stamps == 3:
                tail[b - 1] += ["s_memtime s[56:57]", "s_memrealtime s[58:59]", barw, "s_barrier",
                                "s_mov_b32 m0, s47", "s_add_u32 s47, s47, 1", "s_nop 3", f"v_writelane_b32 v{vX+28}, s56, m0", f"v_writelane_b32 v{vX+29}, s58, m0"]
            else:
                tail[b - 1] += [barw, "s_barrier"]
        for b, step in ((0, 2), (36, 2), (72, 2), (108, 1)):
            for j, grp in enumerate(self.stage_ops()):
                mid[b + j * step] += grp
        for k, g in enumerate((7, 45, 79, 121)):
            tail[g] += [f"s_cmp_lg_u32 s{sQn}, 0", f"s_cbranch_scc1 L_qsnip{k}", f"L_qret{k}:"]
        for g in (47, 79, 111):
            tail[g] += [f"s_sub_u32 s{sT}, s{sT}, 1", "s_cbranch_scc1 L_exit"]
        tail[143] += [f"s_sub_u32 s{sT}, s{sT}, 1", "s_cbranch_scc0 L_sec0"]
        e(".p2align 6")
        body = []
        for p in range(N):
            if p in sec_start:
                body.append(f"L_sec{sec_start[p]}:")
            if not self.opt.get("m16"):
                body.append(mf[p])
            ops = pre[p] + mid[p] + post[p] + tail[p]
            if self.opt.get("ord", 1):
                mv = [o for o in mid[p] if o.startswith("v_")]
                ops = [o for o in mid[p] if o not in mv] + mv + pre[p] + post[p] + tail[p]
            for key, pat in (("nodma", "buffer_load"), ("nobar", "s_barrier"), ("nofma", "v_fma"), ("noadd", "v_add_f32"), ("nods", "ds_read"), ("noexp", "v_exp"), ("nocvt", "v_cvt"), ("nowait", "s_waitcnt")):
                if self.opt.get(key):
                    ops = [o for o in ops if not o.startswith(pat)]
            if self.opt.get("m16"):
                ex = [o for o in ops if o.startswith("v_exp")]
                head = [o for o in ops if o.startswith("v_fma")] if p % 16 == 0 else []
                rest = [o for o in ops if o not in ex and o not in head]
                ops = [mf[p][0]] + head + ex + [mf[p][1]] + rest
                if self.opt.get("sum") and p % 16 in (11, 15):
                    X = slots[p // 16][2]
                    qt = (p % 16) // 15
                    d = ar(224 + 8 * "ABC".index(X) + 4 * qt, 4)
                    ops = [f"v_mfma_f32_16x16x32_bf16 {d}, a[248:251], {vr(vP[X]+4*qt,4)}, {d}"] + ops
            body += ops
        self.many(align8(body) if self.opt.get("align", 1) else body)

    def snippets(self):
        for k in range(4):
            self.e(f"L_qsnip{k}:")
            self.many(self.qpass())
            self.e(f"s_branch L_qret{k}")

    def norm_block(self, X):
        e = self.e
        O = vO[X]
        base = 0 if X == "A" else 32 * 272
        r = vX + 30
        for c in range(8):
            t = vX + 4 * (c & 3)
            for i in range(4):
                e(f"v_pk_mul_f32 {vr(O+8*c+2*i,2)}, {vr(O+8*c+2*i,2)}, {vr(r,2)}")
            for i in range(4):
                e(f"v_cvt_pk_bf16_f32 v{t+i}, v{O+8*c+2*i}, v{O+8*c+2*i+1}")
            e(f"ds_write_b128 v{vStW}, {vr(t,4)} offset:{base+c*32}")

    def store_block(self, X, dst):
        e = self.e
        base = 0 if X == "A" else 32 * 272
        for j in range(8):
            e(f"ds_read_b128 {vr(dst+4*j,4)}, v{vStR} offset:{base+j*1088}")

    def store_issue(self, dst):
        e = self.e
        for j in range(8):
            if j == 4:
                e(f"s_add_u32 s{sOo}, s{sOo}, 4096")
            e(f"s_waitcnt lgkmcnt({7-j})")
            o = f" offset:{(j&3)*1024}" if j & 3 else ""
            e(f"buffer_store_dwordx4 {vr(dst+4*j,4)}, v{vOst}, s[{SRD_O}:{SRD_O+3}], s{sOo} offen{o} {self.st}")
        e(f"s_add_u32 s{sOo}, s{sOo}, 4096")

    def recip(self, X):
        r = vX + 30
        self.e(f"v_rcp_f32 v{r}, v{vL[X]}")
        self.e("s_nop 0")
        self.e(f"v_mov_b32 v{r+1}, v{r}")

    def epilogue(self):
        e = self.e
        e("L_exit:")
        self.stamp(3)
        fill = self.crosshalf("v_add_f32", vL["A"], vT1) + self.crosshalf("v_add_f32", vL["B"], vT1)
        fill += [
            f"v_cmp_ngt_f32 s[{sF}:{sF+1}], s{sLim}, v{vL['A']}",
            f"v_cmp_ngt_f32 s[{sF+2}:{sF+3}], s{sLim}, v{vL['B']}",
            f"v_cmp_ngt_f32 vcc, s{sLim}, v{vL['C']}",
            f"s_mul_i32 s{sOo}, s{sHead}, 73728",
            f"s_lshl_b32 s{sT0}, s{sW}, 14",
            f"s_add_u32 s{sOo}, s{sOo}, s{sT0}",
            f"s_or_b64 s[{sF}:{sF+1}], s[{sF}:{sF+1}], s[{sF+2}:{sF+3}]",
            f"s_or_b64 s[{sF}:{sF+1}], s[{sF}:{sF+1}], vcc",
            f"s_cselect_b32 s{sT1}, 1, 0",
            f"s_lshl_b32 s{sT0}, s{sW}, 2",
            f"s_add_u32 s{sT0}, s{sT0}, {FLAG}",
            f"v_mov_b32 v{vT0}, s{sT0}",
            f"v_mov_b32 v{vT1}, s{sT1}",
            f"ds_write_b32 v{vT0}, v{vT1}",
            f"ds_write_b32 v{vMLW}, v{vL['C']}",
        ]
        qr = [self.qread(X, ks) for X in "ABC" for ks in range(8)]
        for f in range(8):
            e(self.pv("B", f))
            self.many(fill[:3] + qr[:3])
            fill, qr = fill[3:], qr[3:]
        assert not fill and not qr
        self.recip("A")
        e("s_waitcnt lgkmcnt(0)")
        self.norm_block("A")
        dA, dB = vS["A"], vS["C"]
        self.store_block("A", dA)
        self.recip("B")
        self.store_issue(dA)
        self.norm_block("B")
        self.store_block("B", dB)
        self.store_issue(dB)
        self.stamp(4)
        for db in range(4):
            for hi in range(2):
                for lo in range(2):
                    e(f"ds_write_b128 v{vCW}, {ar(aOC+16*db+8*hi+4*lo,4)} offset:{lo*256+(4*db+2*hi)*16}")
        e("s_waitcnt lgkmcnt(0)")
        e("s_barrier")
        e(f"v_mov_b32 v{vT0}, {FLAG}")
        e(f"ds_read_b128 {vr(vX,4)}, v{vT0}")
        for j in range(2):
            for x in range(2):
                e(f"ds_read_b128 {vr(vX+4+8*j+4*x,4)}, v{vMLR} offset:{j*128+x*16}")
        R = vO["A"]
        for j in range(2):
            for w in range(4):
                for lo in range(2):
                    e(f"ds_read_b128 {vr(R+32*j+8*w+4*lo,4)}, v{vCR} offset:{w*WREG+j*4*528+lo*256}")
            if j == 0:
                e("s_waitcnt lgkmcnt(8)")
                e(f"v_or3_b32 v{vX}, v{vX}, v{vX+1}, v{vX+2}")
                e(f"v_or_b32 v{vX}, v{vX}, v{vX+3}")
                for jj in range(2):
                    b = vX + 4 + 8 * jj
                    e(f"v_pk_add_f32 {vr(b,2)}, {vr(b,2)}, {vr(b+2,2)}")
                    e(f"v_pk_add_f32 {vr(b+4,2)}, {vr(b+4,2)}, {vr(b+6,2)}")
                    e(f"v_pk_add_f32 {vr(b,2)}, {vr(b,2)}, {vr(b+4,2)}")
                    e(f"v_add_f32 v{b}, v{b}, v{b+1}")
                    e(f"v_rcp_f32 v{b}, v{b}")
                    e("s_nop 0")
                    e(f"v_mov_b32 v{b+1}, v{b}")
                e(f"v_readfirstlane_b32 s{sT2}, v{vX}")
        e(f"s_mul_i32 s{sOo}, s{sHead}, 73728")
        e(f"s_lshl_b32 s{sT0}, s{sW}, 11")
        e(f"s_add_u32 s{sOo}, s{sOo}, s{sT0}")
        e(f"s_add_u32 s{sOo}, s{sOo}, 65536")
        for j in range(2):
            e(f"s_waitcnt lgkmcnt({8*(1-j)})")
            b = R + 32 * j
            for i in range(4):
                e(f"v_pk_add_f32 {vr(b+2*i,2)}, {vr(b+2*i,2)}, {vr(b+8+2*i,2)}")
                e(f"v_pk_add_f32 {vr(b+16+2*i,2)}, {vr(b+16+2*i,2)}, {vr(b+24+2*i,2)}")
            for i in range(4):
                e(f"v_pk_add_f32 {vr(b+2*i,2)}, {vr(b+2*i,2)}, {vr(b+16+2*i,2)}")
            for i in range(4):
                e(f"v_pk_mul_f32 {vr(b+2*i,2)}, {vr(b+2*i,2)}, {vr(vX+4+8*j,2)}")
            t = vX + 20 + 4 * j
            for i in range(4):
                e(f"v_cvt_pk_bf16_f32 v{t+i}, v{b+2*i}, v{b+2*i+1}")
            o = f" offset:{j*1024}" if j else ""
            e(f"buffer_store_dwordx4 {vr(t,4)}, v{vOst}, s[{SRD_O}:{SRD_O+3}], s{sOo} offen{o} {self.st}")
        self.stamp(5)
        e(f"s_andn2_b32 s{sT2}, s{sT2}, s{sExact}")
        if not self.opt.get("noredo"):
            e("s_cbranch_scc1 L_redo")
        e(f"s_mov_b32 s{sExact}, 0")
        e(f"s_add_u32 s{sHead}, s{sHead}, 1")
        e(f"s_cmp_lt_u32 s{sHead}, 2")
        e("s_cbranch_scc1 L_prologue")
        if self.stamps:
            e("s_waitcnt vmcnt(0)")
            self.stamp(12, False)
            e(f"s_memtime s[{sStamp+38}:{sStamp+39}]")
            e("s_waitcnt lgkmcnt(0)")
            e(f"s_mov_b32 s{sWS+2}, 0x100000")
            e(f"s_mov_b32 s{sWS+3}, 0x20000")
            e(f"v_mov_b32 v{vX}, 0")
            for i in range(20):
                e(f"v_writelane_b32 v{vX}, s{sStamp+2*i}, {i}")
            if self.stamps == 3:
                e(f"v_mov_b32 v{vX}, v{vX+28}")
                e("s_nop 1")
                e(f"v_permlane32_swap_b32 v{vX}, v{vX+29}")
            e(f"s_lshl_b32 s{sT0}, s2, 2")
            e(f"s_add_u32 s{sT0}, s{sT0}, s{sW}")
            e(f"s_lshl_b32 s{sT0}, s{sT0}, 8")
            e(f"v_lshlrev_b32 v{vT0}, 2, v{vLane}")
            e(f"buffer_store_dword v{vX}, v{vT0}, s[{sWS}:{sWS+3}], s{sT0} offen")
        e("L_end:")
        e("s_endpgm")
        e("L_redo:")
        e(f"s_mov_b32 s{sExact}, 1")
        e("s_waitcnt vmcnt(0) lgkmcnt(0)")
        e("s_barrier")
        e("s_branch L_cold")

    def build(self):
        self.header()
        self.setup()
        self.cold()
        self.prologue()
        self.loop()
        self.epilogue()
        self.snippets()
        self.prepass()
        self.footer()
        return "\n".join(self.L) + "\n"


if __name__ == "__main__":
    out = sys.argv[1] if len(sys.argv) > 1 else f"cdna_kernels/{NAME}.s"
    kw = {}
    for a in sys.argv[2:]:
        k, v = a.split("=")
        kw[k] = int(v) if v.lstrip("-").isdigit() else v.replace("_", " ")
    open(out, "w").write(Gen(**kw).build())
```

```python
import re

REG = re.compile(r"\b([va])(?:(\d+)|\[(\d+):(\d+)\])")


def regs(s):
    out = []
    for m in REG.finditer(s):
        lo, hi = (int(m[2]), int(m[2])) if m[2] else (int(m[3]), int(m[4]))
        out += [f"{m[1]}{i}" for i in range(lo, hi + 1)]
    return out


class Op:
    def __init__(self, text, tag=None):
        self.t, self.tag = text, tag
        m = text.split()[0]
        self.m = m
        args = [a.strip() for a in text[len(m):].split(",")]
        self.c = set()
        if text.endswith(":") or m.startswith("."):
            self.k, w, r = "lab", [], []
        elif m.startswith("v_mfma"):
            self.k, w, r = "mfma", regs(args[0]), regs(args[1] + " " + args[2])
            self.c = set(regs(args[3]))
        elif m.startswith("ds_read"):
            self.k, w, r = "dsr", regs(args[0]), regs(args[1])
        elif m.startswith("ds_write"):
            self.k, w, r = "dsw", [], regs(text[len(m):])
        elif m == "buffer_load_dword":
            self.k, w, r = "vm", [], regs(args[1])
        elif m.startswith("buffer_load") and not text.rstrip().endswith("lds"):
            self.k, w, r = "vml", regs(args[0]), regs(args[1])
        elif m.startswith("buffer_"):
            self.k, w, r = "vm", [], regs(text[len(m):])
        elif m.startswith("v_permlane"):
            self.k = "valu"
            w = r = regs(text[len(m):])
        elif m.startswith("v_"):
            self.k = "exp" if m.startswith(("v_exp", "v_rcp")) else "valu"
            w, r = regs(args[0]), regs(",".join(args[1:]))
            if m.startswith("v_writelane"):
                r = r + w
        else:
            self.k, w, r = "sc", [], []
        self.w, self.r = set(w), set(r)


class Gap:
    def __init__(self, mfma=None):
        self.mfma = Op(mfma) if mfma else None
        self.lab, self.sc, self.mem, self.valu, self.post = [], [], [], [], []
        self.lg = self.vm = None
        self.bar = None
        self.need = None
        self.pre = []
        self.aft = []
        self.full = False
        self.id = None

    def used(self):
        n = sum(2 if o.k == "exp" else 1 for o in self.valu)
        n += sum(2 if o.k == "vm" or o.m == "ds_write_b128" else 1 for o in self.mem)
        return n + (2 if self.bar else 0) + (99 if self.full else 0)

    def add(self, op):
        (self.sc if op.k in ("sc", "lab") else self.mem if op.k in ("dsr", "dsw", "vm", "vml") else self.valu).append(op)

    def ops(self):
        out = [Op(l) for l in self.lab]
        if self.mfma:
            out.append(self.mfma)
        out += self.pre
        w = []
        if self.vm is not None:
            w.append(f"vmcnt({self.vm})")
        if self.lg is not None:
            w.append(f"lgkmcnt({self.lg})")
        if w:
            out.append(Op("s_waitcnt " + " ".join(w)))
        if self.bar:
            out.append(Op("s_barrier"))
        return out + self.aft + self.sc + self.mem + self.valu + self.post


def cost(op):
    return 2 if op.k in ("exp", "vm") or op.m == "ds_write_b128" else 1


def place(G, text, lo, hi, cap=2, tag=None):
    op = Op(text, tag)
    hi = min(hi, len(G) - 1)
    assert lo <= hi, (text, lo, hi)
    if op.k == "sc":
        for n in range(9):
            for g in range(lo, hi + 1):
                if len(G[g].sc) <= n and G[g].bar is None and not G[g].full:
                    G[g].add(op)
                    return g
    for c in range(cap, 99):
        for g in range(lo, hi + 1):
            if G[g].used() + cost(op) <= c:
                G[g].add(op)
                return g


def chain(G, ops, lo, hi):
    hi = min(hi, len(G) - 1)
    ol = [(Op(x[0], x[4] if len(x) > 4 else None), x[1], x[2] if len(x) > 2 else 0, x[3] if len(x) > 3 else hi) for x in ops]
    rank = lambda o: 0 if o.k == "sc" else 1 if o.k in ("dsr", "dsw", "vm", "vml") else 2
    for c in range(2, 99):
        g, extra, res, prev = lo, {}, [], None
        for o, d, olo, ohi in ol:
            if prev is not None:
                g += max(d, 1 if rank(o) < rank(prev) else 0)
            g = max(g, olo)
            if o.k == "sc":
                while g <= hi and (G[g].bar or G[g].full or (c < 4 and (G[g].sc or extra.get(("s", g))))):
                    g += 1
                extra[("s", g)] = 1
            else:
                while g <= hi and G[g].used() + extra.get(g, 0) + cost(o) > c:
                    g += 1
                extra[g] = extra.get(g, 0) + cost(o)
            if g > min(hi, ohi):
                break
            res.append(g)
            prev = o
        else:
            for x, g in zip(ol, res):
                G[g].add(x[0])
            return res
    raise RuntimeError("chain does not fit")


def insert_waits(traces, batch=7):
    changed = True
    while changed:
        changed = False
        for tr, vq0 in traces:
            lq, vq = [], list(vq0)
            nbar = 0
            for n, g in enumerate(tr):
                use = [o for o in g.mem + g.valu]
                if n + 1 < len(tr) and tr[n + 1].mfma:
                    nx = tr[n + 1].mfma
                    use.append(nx)
                    for o in g.mem:
                        assert not (o.w & (nx.r | nx.c | nx.w)), ("load feeds next mfma", o.t)
                touched = set().union(*[o.r | o.w | o.c for o in use]) if use else set()
                k = -1
                for i, (o, at) in enumerate(lq):
                    if o.w & touched or (g.bar and o.tag != "priv") or (g.need == "ds" and o.tag == "x"):
                        k = i
                if k >= 0:
                    while k + 1 < len(lq) and lq[k + 1][1] <= n - batch:
                        k += 1
                    c = min(len(lq) - 1 - k, 15)
                    if g.lg is None or c < g.lg:
                        g.lg, changed = c, True
                if g.lg is not None:
                    lq = lq[max(0, len(lq) - g.lg):] if g.lg else []
                k = -1
                for i, (o, st) in enumerate(vq):
                    if o.w & touched or (g.bar == "ring" and st == nbar):
                        k = i
                if k >= 0:
                    c = len(vq) - 1 - k
                    if g.vm is None or c < g.vm:
                        g.vm, changed = c, True
                if g.vm is not None:
                    vq = vq[max(0, len(vq) - g.vm):] if g.vm else []
                if g.bar == "ring":
                    nbar += 1
                seen = set()
                for o in g.mem:
                    assert not (seen & (o.r | o.w)), ("same-gap load use", o.t)
                    seen |= o.w
                    if o.k in ("dsr", "dsw"):
                        lq.append((o, n))
                    else:
                        vq.append((o, nbar + 3 if o.tag == "stage" else None))
                for o in g.valu:
                    assert not (seen & (o.r | o.w)), ("same-gap load use", o.t)
                assert len(vq) <= 63


def check_hazards(ops, name, fix=False):
    pos, hist, bad, out = 0, [], 0, []
    for o in ops:
        if o.k == "lab":
            out.append(o)
            continue
        short = 0
        for p, q in hist:
            d, need = pos - p - 1, 0
            if q.k == "mfma":
                if o.k == "mfma":
                    if q.w & o.r:
                        need = 8
                    elif q.w & o.c and q.w != o.c:
                        need = 6
                elif o.k != "sc" and q.w & (o.r | o.w):
                    need = 8
                if o.k in ("valu", "exp") and q.c & o.w:
                    need = max(need, 3)
            elif q.k in ("valu", "exp"):
                if o.k == "mfma" and q.w & (o.r | o.c):
                    need = 2
                elif o.m.startswith("v_permlane") and q.w & o.r:
                    need = 2
                elif q.k == "exp" and o.k in ("valu", "exp", "dsw", "dsr", "vm") and q.w & o.r:
                    need = 1
            elif q.k == "vm" and "store" in q.m and o.k in ("valu", "exp", "mfma") and q.r & o.w:
                need = 2
            elif q.k == "sc" and " m0," in q.t and o.k == "vm" and o.t.endswith("lds"):
                need = 1
            if d < need:
                bad += 1
                short = max(short, need - d)
                if bad < 8 and not fix:
                    print(f"HAZARD {name}: [{q.t}] -> [{o.t}] dist {d} need {need}")
        if short and fix:
            out.append(Op(f"s_nop {short-1}"))
            pos += short
        out.append(o)
        hist.append((pos, o))
        pos += int(o.t.split()[1]) + 1 if o.m == "s_nop" else 1
        hist = [h for h in hist if pos - h[0] <= 10]
    return out if fix else bad
```

```python
import struct
import sys
from sched import Op, Gap, place, chain, insert_waits, check_hazards

NAME = "standalone__mha_softmax__near_ridge"

WSTR = 4128
STAGE = 4 * WSTR
RING = 5 * STAGE
GRP = 2176
W0 = RING
WREG = 9 * GRP
DUMMY = W0 + 4 * WREG
LX = DUMMY + 2048
FLAG = LX + 256
LDS_BYTES = FLAG + 64
assert LDS_BYTES <= 163840

sW = 3
SRD_Q, SRD_K, SRD_V, SRD_O = 12, 16, 20, 24
sC = 28
sRd, sOff, sWStr, sT, sH, sBig = 30, 31, 32, 33, 34, 35
sQm0, sQoff, sRel, sDum, sWbase = 36, 37, 38, 39, 40
sT0, sT1, sT2, sLim, sMask, sM0s, sNst = 41, 42, 43, 44, 45, 46, 47
sF = 48
sWS = 52

vOst, vDMA, vKb, vVb, vK, vV, vQa, vQc, vStA, vStC, vAux, vAuxB, vXc, vLx, vChk, vK0 = range(16)
XS = ["a0", "a1", "b0", "b1", "c"]
vS = {x: 16 + 8 * i for i, x in enumerate(XS)}
vP = {x: 56 + 4 * i for i, x in enumerate(XS)}
vM = {x: 76 + 4 * i for i, x in enumerate(XS)}
vO = {x: 96 + 32 * i for i, x in enumerate(XS[:4])}
vR, vTm, vL, vDead, vSt0, vD = 224, 228, 232, 236, 238, 240
aO = 0
aQ = {x: 32 + 16 * i for i, x in enumerate(XS)}
aK, aV = 112, 144
aL = {x: 176 + 4 * i for i, x in enumerate(XS)}
aOne, aK0, aSave, aStR = 196, 200, 216, 226
MF = "v_mfma_f32_16x16x32_bf16"
SEQ = [("qk", "a1", 0), ("pv", "b", -1), ("qk", "c", 0), ("qk", "b0", 0), ("pv", "a", 0), ("qk", "b1", 0), ("pv", "c", 0),
       ("qk", "a0", 1), ("qk", "a1", 1), ("pv", "b", 0), ("qk", "b0", 1), ("qk", "b1", 1), ("pv", "a", 1), ("qk", "a0", 2)]
UNITS = [("a0", 0), ("a1", 0), ("c", 0), ("b0", 0), ("b1", 0), ("a0", 1), ("a1", 1), ("b0", 1), ("b1", 1)]


def f2u(x):
    return struct.unpack("<I", struct.pack("<f", x))[0]


def vr(b, n=1):
    return f"v{b}" if n == 1 else f"v[{b}:{b+n-1}]"


def ar(b, n=1):
    return f"a{b}" if n == 1 else f"a[{b}:{b+n-1}]"


def qk(x, f, zero=False):
    kt, ks = f >> 2, f & 3
    d = vr(vS[x] + 4 * kt, 4)
    c = d if ks else ("0" if zero else vr(vM[x], 4))
    return f"{MF} {d}, {ar(aK+4*f,4)}, {ar(aQ[x]+4*ks,4)}, {c}"


def pvgroup(X, first):
    xs = ["c"] if X == "c" else [X + "0", X + "1"]
    r = [f"{MF} {ar(aL[x],4)}, {ar(aOne,4)}, {vr(vP[x],4)}, {'0' if first else ar(aL[x],4)}" for x in xs]
    for dt in range(8):
        for x in (xs if dt % 2 == 0 else xs[::-1]):
            o = ar(aO + 4 * dt, 4) if x == "c" else vr(vO[x] + 4 * dt, 4)
            r.append(f"{MF} {o}, {ar(aV+4*dt,4)}, {vr(vP[x],4)}, {'0' if first else o}")
    return r


def mchain(x):
    d = vr(vM[x], 4)
    return [f"{MF} {d}, {ar(aK0+4*ks,4)}, {ar(aQ[x]+4*ks,4)}, {d if ks else '0'}" for ks in range(4)]


def negate(x):
    return [f"v_pk_mul_f32 {vr(vM[x]+i,2)}, {vr(vM[x]+i,2)}, -1.0 op_sel_hi:[1,0]" for i in (0, 2)]


def kread(f):
    return f"ds_read_b128 {ar(aK+4*f,4)}, v{vK} offset:{(f>>2)*1024+(f&3)*256}"


def vread(dt, s):
    return f"ds_read_b64_tr_b16 {ar(aV+4*dt+2*s,2)}, v{vV} offset:{2048+s*1024+(dt>>1)*256+(dt&1)*32}"


def qread(x, ks):
    a, b = (vQc, 0) if x == "c" else (vQa, XS.index(x) * 2 * GRP)
    return f"ds_read_b128 {ar(aQ[x]+4*ks,4)}, v{a} offset:{b+ks*256}"


def scale(d, n):
    t = vTm + 2 * (n & 1)
    return [f"v_lshlrev_b32 v{t}, 16, v{d}", f"v_and_b32 v{t+1}, s{sMask}, v{d}",
            f"v_pk_mul_f32 {vr(t,2)}, {vr(t,2)}, s[{sC}:{sC+1}]", f"v_cvt_pk_bf16_f32 v{d}, v{t}, v{t+1}"]


def idx(G, *key):
    return [g.id for g in G].index(key)


class Gen:
    def __init__(self, ld="nt", st="sc0 sc1", stamps=0, lim=40, st0=22, **opt):
        self.L, self.ld, self.st, self.stamps, self.lim, self.st0, self.opt = [], ld, st, stamps, lim, st0, opt
        self.fix = []

    def e(self, s):
        self.L.append(s if s.endswith(":") else "    " + s)

    def many(self, lst):
        for s in lst:
            self.e(s)

    def dma(self, srd, soff, off):
        o = f" offset:{off}" if off else ""
        return f"buffer_load_dwordx4 v{vDMA}, s[{srd}:{srd+3}], s{soff} offen{o} {self.ld} lds"

    def stage(self):
        return [self.dma(SRD_K, sOff, 0), self.dma(SRD_K, sOff, 1024), self.dma(SRD_V, sOff, 2048), self.dma(SRD_V, sOff, 3072)]

    def dummy(self, i):
        return f"buffer_load_dword v{vDead+i}, v{vOst}, s[{SRD_Q}:{SRD_Q+3}], s{sBig} offen"

    def store(self, d, soff, off):
        o = f" offset:{off}" if off else ""
        return f"buffer_store_dwordx4 {vr(d,4)}, v{vOst}, s[{SRD_O}:{SRD_O+3}], s{soff} offen{o} {self.st}"

    def barrier(self, g, kind):
        g.bar = kind
        if self.stamps:
            g.lg = 0
            g.pre = [Op("s_memtime s[56:57]"), Op("s_memrealtime s[58:59]")]
            g.aft = [Op(t) for t in (f"s_mov_b32 s{sM0s}, m0", f"s_mov_b32 m0, s{sNst}", f"s_add_u32 s{sNst}, s{sNst}, 1", "s_nop 3",
                                     f"v_writelane_b32 v{vSt0}, s56, m0", f"v_writelane_b32 v{vSt0+1}, s58, m0", f"s_mov_b32 m0, s{sM0s}", "s_nop 0")]

    def period(self, t0, flav):
        G = []
        for kind, x, d in SEQ:
            t = t0 + d
            ms = [qk(x, f) for f in range(8)] if kind == "qk" else pvgroup(x, flav == "T" and (t == 16 or (x == "c" and t == 17)))
            for i, m in enumerate(ms):
                G.append(Gap(m if t < 32 else None))
                G[-1].id = (kind, x, t, i)
        assert len(G) == 153
        for k, (x, d) in enumerate(UNITS):
            if t0 + d < 32:
                for i in range(8):
                    G[17 * k + 2 * i].add(Op(f"v_exp_f32 v{vS[x]+i}, v{vS[x]+i}"))
                for j in range(4):
                    G[17 * k + 4 * j + 3].add(Op(f"v_cvt_pk_bf16_f32 v{vP[x]+j}, v{vS[x]+2*j}, v{vS[x]+2*j+1}"))
        for h, (B, pv0, pa, k0, kn, ck) in enumerate(((9, 8, 42, 60, 77, 84), (86, 93, 127, 119, 145, 152))):
            t = t0 + h
            if t >= 32:
                continue
            self.barrier(G[B], "ring")
            G[B].id2 = ("bar", t)
            G[ck].full = flav in "AB"
            g = B
            if flav == "T" and t == 16:
                X = B + (13 if h == 0 else 12)
                par = t0 & 1
                self.xwrite(G, par, B + 1, X - 3)
                self.barrier(G[X], "x")
                g = self.xread(G, par, X + 1, X + 6) + 6
                G[g + 1].need = "ds"
                self.xpos = G[g + 1]
            if flav != "E":
                for o in self.stage():
                    g = place(G, o, g + 1, g + 6, tag="stage")
            if flav == "A":
                r0 = chain(G, [(f"s_add_u32 s{sRel}, s{sRel}, {GRP}", 1), (f"s_cmp_lt_u32 s{sRel}, {WREG}", 1),
                               (f"s_cselect_b32 s{sT1}, s{sRel}, s{sDum}", 1), (f"v_add_u32 v{vAux}, s{sT1}, v{vAuxB}", 0)] +
                           [(f"ds_read_b128 {vr(vD+4*p,4)}, v{vAux} offset:{1024*p}", 0) for p in range(2)], B + 1, B + 14)
                assert r0[2] <= g
            gv = 0
            for dt in range(8):
                for s in range(2):
                    gv = max(gv, place(G, vread(dt, s), max(B + 1, pv0 + 3 + 2 * dt), pa + 2 * dt - 4))
            if t + 1 >= 32:
                continue
            gk = 0
            for f in range(8):
                gk = max(gk, place(G, kread(f), k0 + f, kn + f - 7))
            ops = [(f"s_add_u32 s{sOff}, s{sOff}, 8192", 1)]
            adv = [(f"s_add_u32 m0, s{sRd}, s{sWStr}", 1), (f"s_add_u32 s{sRd}, s{sRd}, {STAGE}", 1),
                   (f"s_cmp_eq_u32 s{sRd}, {RING}", 1), (f"s_cselect_b32 s{sRd}, 0, s{sRd}", 1),
                   (f"v_add_u32 v{vV}, s{sRd}, v{vVb}", 0, gv), (f"v_add_u32 v{vK}, s{sRd}, v{vKb}", 0, gk)]
            side = None
            if flav == "A":
                ops += [(f"s_cmp_ge_u32 s{sT}, 6", 1), (f"s_cselect_b32 m0, s{sQm0}, {DUMMY}", 1),
                        (f"s_cselect_b32 s{sT0}, s{sQoff}, s{sBig}", 1),
                        (self.dma(SRD_Q, sT0, 0), 1), (self.dma(SRD_Q, sT0, 1024), 1),
                        (f"s_add_u32 s{sQm0}, s{sQm0}, {GRP}", 1), (f"s_add_u32 s{sQoff}, s{sQoff}, 2048", 1)]
                side = []
                for p in range(2):
                    for i in range(4):
                        side += [(o, 0) for o in scale(vD + 4 * p + i, i)]
                    side.append((f"ds_write_b128 v{vAux}, {vr(vD+4*p,4)} offset:{1024*p}", 0))
            elif flav == "B":
                ops += [(f"v_add_u32 v{vAux}, {GRP}, v{vAux}", 0)]
                ops += [(f"ds_read_b128 {vr(vD+4*p,4)}, v{vAux} offset:{1088*p}", 0, 0, 999, "priv") for p in range(2)]
                ops += [(f"s_add_u32 s{sRel}, s{sRel}, 2048", 1), (f"s_cmp_lt_u32 s{sRel}, 18432", 1),
                        (f"s_cselect_b32 s{sT0}, s{sRel}, s{sBig}", 1),
                        (self.store(vD, sT0, 0), 5), (self.store(vD + 4, sT0, 1024), 1)]
            elif flav == "T":
                ops += [(self.dummy(0), 1), (self.dummy(1), 1)]
            if flav == "E":
                ops = []
            lo = 111 if h == 1 and flav == "B" else g + 1
            if flav == "T" and t == 17 and h == 1:
                ops, adv = [], []
            r = chain(G, ops + adv, lo, (76 if h == 0 else ck - 2)) if ops + adv else None
            if side:
                chain(G, side, r0[-1] + 7, ck - 1)
            if flav in "AB":
                place(G, f"s_sub_u32 s{sT}, s{sT}, 1", ck - 1, ck - 1)
                G[ck].sc.append(Op(f"s_cbranch_scc1 L_{flav}x" if h == 0 else f"s_cbranch_scc0 L_{flav}0"))
        return G

    def xwrite(self, G, par, lo, hi):
        o = [(f"ds_write_b128 v{vXc}, {ar(aO+16*(1-par)+4*j,4)} offset:{(1-par)*WSTR+1024*j}", 0) for j in range(4)]
        o.append((f"ds_write_b32 v{vLx}, {ar(aL['c'])} offset:{(1-par)*64}", 0))
        return chain(G, o, lo, hi)[-1]

    def xread(self, G, par, lo, hi):
        o = [(f"ds_read_b128 {vr(vD+4*j,4)}, v{vXc} offset:{par*WSTR+1024*j}", 0, 0, 999, "x") for j in range(4)]
        o.append((f"ds_read_b32 v{vL}, v{vLx} offset:{par*64}", 0, 0, 999, "x"))
        return chain(G, o, lo, hi)[-1]

    def norm_c(self, par):
        r = vL + 2
        o = [f"v_accvgpr_read_b32 v{vL+1}, {ar(aL['c'])}", f"v_add_f32 v{vL}, v{vL}, v{vL+1}", f"v_rcp_f32 v{r}, v{vL}",
             f"v_add_f32 v{vChk}, v{vChk}, v{vL}"]
        for j in range(4):
            d = vD + 4 * j
            o += [f"v_accvgpr_read_b32 v{vTm+i}, {ar(aO+16*par+4*j+i)}" for i in range(4)]
            o += [f"v_pk_add_f32 {vr(d+i,2)}, {vr(d+i,2)}, {vr(vTm+i,2)}" for i in (0, 2)]
            o += self.pack(d, r, vStC, (4 * par + j) * 32)
        return [(t, 0) for t in o]

    def pack(self, d, r, addr, off):
        return [f"v_pk_mul_f32 {vr(d,2)}, {vr(d,2)}, {vr(r,2)} op_sel_hi:[1,0]",
                f"v_pk_mul_f32 {vr(d+2,2)}, {vr(d+2,2)}, {vr(r,2)} op_sel_hi:[1,0]",
                f"v_cvt_pk_bf16_f32 v{d}, v{d}, v{d+1}", f"v_cvt_pk_bf16_f32 v{d+1}, v{d+2}, v{d+3}",
                f"ds_write_b64 v{addr}, {vr(d,2)} offset:{off}"]

    def norm(self, G, X, t, tn):
        p = idx(G, "pv", X, t, 0)
        n = idx(G, "pv", X, tn, 0) if tn else 9999
        o = []
        for q in range(2):
            o += [(f"v_accvgpr_read_b32 v{vR+2*q+1}, {ar(aL[X+str(q)])}", 0, p + 6, n - 1)]
        for q in range(2):
            o += [(f"v_rcp_f32 v{vR+2*q}, v{vR+2*q+1}", 0), (f"v_add_f32 v{vChk}, v{vChk}, v{vR+2*q+1}", 0)]
        for dt in range(8):
            for q in range(2):
                x = X + str(q)
                o += [(s, 0, p + 2 * dt + 8, n + 2 * dt) for s in self.pack(vO[x] + 4 * dt, vR + 2 * q, vStA, XS.index(x) * 2 * GRP + dt * 32)]
        return o

    def trans(self, par):
        if par == 0:
            G = self.period(14, "T")[85:] + self.period(16, "T")[:111]
            ins = {"a0": ("pv", "a", 15), "a1": ("qk", "a0", 16), "c": ("qk", "a1", 16), "b0": ("pv", "b", 15), "b1": ("qk", "c", 16)}
        else:
            G = self.period(15, "T") + self.period(17, "T")[:77]
            ins = {"a0": ("qk", "b1", 15), "a1": ("pv", "c", 15), "c": ("qk", "a0", 16), "b0": ("qk", "a1", 16), "b1": ("pv", "b", 15)}
        for x, key in ins.items():
            i = idx(G, *key, 0)
            new = [Gap(m) for m in mchain(x)]
            for n, g in enumerate(new):
                g.id = ("m", x, 16, n)
            G[i:i] = new
        b15 = [getattr(g, "id2", None) for g in G].index(("bar", 15))
        m0 = idx(G, "m", "a0", 16, 0)
        chain(G, [(f"ds_read_b128 {ar(aK0+4*ks,4)}, v{vK0} offset:{ks*256}", 0) for ks in range(4)], b15 + 1, m0 - 8)
        for x in ins:
            last = 15 if (x != "c" or par) else 14
            lo = idx(G, "qk", x, last, 7) if ("qk", x, last, 7) in [g.id for g in G] else 0
            m = idx(G, "m", x, 16, 0)
            chain(G, [(qread(x, ks), 0) for ks in range(4)], lo, m - 8)
            nq = idx(G, "qk", x, 17 if (x == "c" and par) else 16, 0)
            lab = f"L_fix{par}{x}"
            r = chain(G, [(o, 0) for o in negate(x)], m + 8, nq - 2)
            G[r[-1]].post += [Op(f"s_cbranch_vccnz {lab}"), Op(f"{lab}r:")]
            self.fix += [f"{lab}:"] + [f"v_accvgpr_read_b32 v{vM[x]+i}, a{aSave+5+XS.index(x)}" for i in range(4)] + ["s_nop 1", f"s_branch {lab}r"]
        ra = chain(G, self.norm(G, "a", 15, 16), 0, len(G))
        xp = G.index(self.xpos)
        chain(G, self.norm_c(par), xp, idx(G, "pv", "c", 16 + par, 0) - 1)
        chain(G, self.norm(G, "b", 15, 16), ra[-1], len(G))
        k = (self.st0 - 17 + (1 - par))
        chain(G, [(f"v_accvgpr_read_b32 v{vAux}, a{aStR}", 0), (f"v_subrev_u32 v{vAux}, {k*GRP}, v{vAux}", 0),
                  (f"s_mov_b32 s{sRel}, {(-k*2048) & 0xffffffff}", 0), (f"s_mov_b32 s{sT}, 13", 1)], 2, 60)
        G[-1].post.append(Op(f"s_branch L_B{111 if par == 0 else 77}"))
        return G

    def tail(self, par):
        G = self.period(30, "E")[85:] + self.period(32, "E")[:26] if par == 0 else self.period(31, "E")[:111]
        G = [g for g in G if g.mfma or g.valu or g.mem or g.sc]
        b31 = [getattr(g, "id2", None) for g in G].index(("bar", 31))
        pb = idx(G, "pv", "b", 31, 0)
        nm = len(G)
        G += [Gap() for _ in range(200)]
        X = pb + 2
        self.xwrite(G, par, idx(G, "pv", "c", 31, 8) + 3 if par else b31 + 1, X - 1)
        self.barrier(G[X], "x")
        g = self.xread(G, par, X + 1, X + 3)
        pc = {"a": 2 * par, "b": 8 + 2 * par, "c": 16 * (1 - par)}

        def stores(X, n, d):
            o = [(f"ds_read_b128 {vr(d+4*j,4)}, v{vAux} offset:{(pc[X]+j)*1088}", 0, 0, 999, "priv") for j in range(n)]
            for j in range(n):
                if j % 4 == 0:
                    o.append((f"s_mov_b32 s{sT0}, {73728+(pc[X]+j)*1024}", 0))
                o.append((self.store(d + 4 * j, sT0, (j % 4) * 1024), 0))
            return o
        place(G, f"v_accvgpr_read_b32 v{vAux}, a{aStR}", 2, 20)
        ra = chain(G, self.norm(G, "a", 31, None) + stores("a", 8, vO["a0"]), 0, X + 6)
        rc = chain(G, self.norm_c(par), g + 4, nm + 2)
        rb = chain(G, self.norm(G, "b", 31, None), max(ra[-1], rc[-1]), max(ra[-1], rc[-1]) + 22)
        g = rb[-1] + 1
        G[g].post += [Op(t) for t in (f"v_cmp_ngt_f32 s[{sF}:{sF+1}], s{sLim}, v{vChk}", f"s_lshl_b32 s{sT1}, s{sW}, 2",
                                      f"s_add_u32 s{sT1}, s{sT1}, {FLAG}", f"s_cmp_lg_u64 s[{sF}:{sF+1}], 0", f"s_cselect_b32 s{sT2}, 1, 0",
                                      f"v_mov_b32 v{vTm}, s{sT1}", f"v_mov_b32 v{vTm+1}, s{sT2}", f"v_mov_b32 v{vTm+2}, {FLAG}")]
        G[g + 1].add(Op(f"ds_write_b32 v{vTm}, v{vTm+1}"))
        rb = chain(G, stores("b", 8, vO["b0"]), g + 1, g + 10)
        g = rb[-1] + 1
        self.barrier(G[g], "x")
        G[g].add(Op(f"ds_read_b128 {vr(vD,4)}, v{vTm+2}"))
        rb = chain(G, stores("c", 2, vO["a1"]), g + 1, g + 4)
        g = rb[-1] + 1
        G[g].valu += [Op(f"v_or3_b32 v{vD}, v{vD}, v{vD+1}, v{vD+2}"), Op(f"v_or_b32 v{vD}, v{vD}, v{vD+3}")]
        G[g].post.append(Op("s_branch L_fin"))
        return G[:g + 1]

    def header(self):
        for line in open(f"cdna_kernels/{NAME}.s.ref").read().split("\n"):
            if line.startswith("; @launch"):
                break
            self.L.append(line)
        self.L += [f"; @launch grid=(256,1,1) block=(256,1,1) lds={LDS_BYTES}", '.amdgcn_target "amdgcn-amd-amdhsa--gfx950"', ".text",
                   f".globl {NAME}_kernel", ".p2align 12", ".p2align 8", f".type {NAME}_kernel,@function", f"{NAME}_kernel:"]

    def footer(self):
        self.L += ['.section .rodata,"a"', ".p2align 6", f".amdhsa_kernel {NAME}_kernel", "  .amdhsa_next_free_vgpr 512",
                   "  .amdhsa_next_free_sgpr 102", "  .amdhsa_accum_offset 256", "  .amdhsa_group_segment_fixed_size 0",
                   "  .amdhsa_kernarg_size 48", "  .amdhsa_user_sgpr_count 2", "  .amdhsa_user_sgpr_kernarg_segment_ptr 1",
                   "  .amdhsa_system_sgpr_workgroup_id_x 1", ".end_amdhsa_kernel"]

    def setup(self):
        t, lane = vTm, vL
        o = ["s_cmp_ge_u32 s2, 256", "s_cbranch_scc1 L_end", "s_load_dwordx4 s[4:7], s[0:1], 0", "s_load_dwordx4 s[8:11], s[0:1], 16"]
        if self.stamps:
            o += [f"s_load_dwordx2 s[{sWS}:{sWS+1}], s[0:1], 40", "s_memtime s[56:57]", "s_memrealtime s[58:59]", f"s_mov_b32 s{sNst}, 1"]
        o += ["v_lshrrev_b32 v1, 6, v0", f"v_and_b32 v{lane}, 63, v0", f"v_readfirstlane_b32 s{sW}, v1",
              f"v_bfe_u32 v{t}, v{lane}, 2, 2", f"v_lshlrev_b32 v{vDMA}, 8, v{t}", f"v_lshrrev_b32 v{t}, 4, v{lane}",
              f"v_lshl_add_u32 v{vDMA}, v{t}, 6, v{vDMA}", f"v_and_b32 v{t}, 3, v{lane}", f"v_lshl_add_u32 v{vDMA}, v{t}, 4, v{vDMA}",
              f"s_mul_i32 s{sWStr}, s{sW}, {WSTR}", f"s_mul_i32 s{sT2}, s{sW}, 18432", f"v_lshl_add_u32 v{vOst}, v{lane}, 4, s{sT2}",
              f"s_mul_i32 s{sT0}, s2, 147456", f"s_lshl_b32 s{sT1}, s2, 18", f"s_mov_b32 s{sH}, 0", f"s_mov_b32 s{sBig}, 0x40000000",
              "s_mov_b64 vcc, 0", "s_waitcnt lgkmcnt(0)"]
        for d, b, off, n in ((SRD_K, 6, sT1, 262144), (SRD_Q, 4, sT0, 147456), (SRD_V, 8, sT1, 262144 + 10240), (SRD_O, 10, sT0, 147456)):
            o += [f"s_add_u32 s{d}, s{b}, s{off}", f"s_addc_u32 s{d+1}, s{b+1}, 0"]
            if d == SRD_V:
                o += [f"s_sub_u32 s{d}, s{d}, 10240", f"s_subb_u32 s{d+1}, s{d+1}, 0"]
            o += [f"s_mov_b32 s{d+2}, {n}", f"s_mov_b32 s{d+3}, 0x20000"]
        if self.stamps:
            o += [f"v_writelane_b32 v{vSt0}, s56, 0", f"v_writelane_b32 v{vSt0+1}, s58, 0"]
        return o

    def consts(self):
        t, lane, r, g, x = vTm, vL, vTm + 1, vTm + 2, vTm + 3
        c = hex(f2u(128 ** -0.5 * 1.4426950408889634))
        o = [f"v_bfe_u32 v{lane}, v{vOst}, 4, 6", f"s_mov_b32 s{sC}, {c}", f"s_mov_b32 s{sC+1}, {c}",
             f"s_mov_b32 s{sLim}, {hex(f2u(2.0 ** self.lim))}", f"s_mov_b32 s{sMask}, 0xffff0000",
             f"s_mul_i32 s{sWbase}, s{sW}, {WREG}", f"s_add_u32 s{sWbase}, s{sWbase}, {W0}", f"s_sub_u32 s{sDum}, {DUMMY}, s{sWbase}",
             f"v_and_b32 v{r}, 15, v{lane}", f"v_lshrrev_b32 v{g}, 4, v{lane}", f"v_lshlrev_b32 v{vK0}, 4, v{g}",
             f"v_and_b32 v{t}, 3, v{r}", f"v_lshl_add_u32 v{x}, v{t}, 6, v{vK0}",
             f"v_lshlrev_b32 v{vVb}, 3, v{t}", f"v_lshrrev_b32 v{t}, 2, v{r}", f"v_lshl_add_u32 v{vVb}, v{t}, 6, v{vVb}",
             f"v_mul_u32_u24 v{vKb}, {WSTR}, v{t}", f"v_add_u32 v{vKb}, v{vKb}, v{x}",
             f"v_mul_u32_u24 v{t}, {WSTR}, v{g}", f"v_add_u32 v{vVb}, v{vVb}, v{t}",
             f"v_bfe_u32 v{t}, v{r}, 2, 1", f"v_lshl_add_u32 v{x}, v{t}, 10, v{x}", f"v_lshrrev_b32 v{t}, 3, v{r}",
             f"v_mul_u32_u24 v{t}, {GRP}, v{t}", f"v_add_u32 v{x}, v{x}, v{t}",
             f"s_and_b32 s{sT0}, s{sW}, 1", f"s_mul_i32 s{sT0}, s{sT0}, {GRP}", f"s_add_u32 s{sT0}, s{sT0}, s{sWbase}",
             f"s_lshr_b32 s{sT1}, s{sW}, 1", f"s_mul_i32 s{sT2}, s{sT1}, {2*WREG}", f"s_add_u32 s{sT2}, s{sT2}, {W0+8*GRP}",
             f"v_add_u32 v{vQa}, s{sT0}, v{x}", f"v_add_u32 v{vQc}, s{sT2}, v{x}",
             f"v_mul_u32_u24 v{x}, 272, v{r}", f"v_lshl_add_u32 v{x}, v{g}, 3, v{x}",
             f"v_add_u32 v{vStA}, s{sT0}, v{x}", f"v_add_u32 v{vStC}, s{sT2}, v{x}",
             f"v_mul_u32_u24 v{x}, 272, v{g}", f"v_lshl_add_u32 v{x}, v{r}, 4, v{x}", f"v_add_u32 v{x}, s{sWbase}, v{x}",
             f"v_accvgpr_write_b32 a{aStR}, v{x}", f"v_lshl_add_u32 v{vAuxB}, v{lane}, 4, s{sWbase}", f"v_mov_b32 v{vAux}, v{vAuxB}",
             f"s_mul_i32 s{sT0}, s{sT1}, {2*WSTR}", f"v_lshl_add_u32 v{vXc}, v{lane}, 4, s{sT0}",
             f"s_lshl_b32 s{sT0}, s{sT1}, 7", f"s_add_u32 s{sT0}, s{sT0}, {LX}", f"v_lshl_add_u32 v{vLx}, v{r}, 2, s{sT0}",
             f"v_mov_b32 v{vChk}, 0", f"v_add_u32 v{vK}, {4*STAGE}, v{vKb}", f"v_mov_b32 v{vV}, v{vVb}",
             f"v_and_b32 v{t}, 3, v{lane}", f"v_cmp_eq_u32 s[{sF}:{sF+1}], 0, v{t}", f"v_mov_b32 v{x}, 0x3f803f80", "s_nop 1",
             f"v_cndmask_b32 v{x}, 0, v{x}, s[{sF}:{sF+1}]"]
        o += [f"v_accvgpr_write_b32 a{aOne+i}, v{x}" for i in range(4)]
        o += [f"v_mov_b64 {vr(96+2*i,2)}, 0" for i in range(64)]
        o += [f"v_mov_b64 {vr(vP['b0']+2*i,2)}, 0" for i in range(4)]
        o += [f"v_accvgpr_write_b32 a{i}, 0" for i in list(range(aO, aO + 32)) + list(range(aV, aV + 52))]
        o += [f"s_mov_b32 s{sRd}, 0", f"s_mov_b32 s{sT}, 14", f"s_mov_b32 s{sQm0}, s{sWbase}",
              f"s_mul_i32 s{sQoff}, s{sW}, 18432", f"s_add_u32 s{sQoff}, s{sQoff}, 73728", f"s_mov_b32 s{sRel}, {(-6*GRP) & 0xffffffff}"]
        return o

    def start(self):
        qd = [16 + 4 * j for j in range(10)] + [76 + 4 * j for j in range(5)] + [vD + 4 * j for j in range(3)]
        o = ["L_start:", f"s_lshl_b32 s{sOff}, s{sW}, 11", f"s_add_u32 m0, s{sWStr}, {4*STAGE}",
             f"s_mul_i32 s{sT0}, s{sH}, 73728", f"s_mul_i32 s{sT1}, s{sW}, 18432"] + self.stage()[:2]
        o += [f"s_add_u32 s{sT0}, s{sT0}, s{sT1}", f"s_add_u32 s{sOff}, s{sOff}, 8192"]
        for j in range(18):
            of = f" offset:{(j%4)*1024}" if j % 4 else ""
            o.append(f"buffer_load_dwordx4 {vr(qd[j],4)}, v{vDMA}, s[{SRD_Q}:{SRD_Q+3}], s{sT0} offen{of} {self.ld}")
            if j % 4 == 3:
                o.append(f"s_add_u32 s{sT0}, s{sT0}, 4096")
        for g in range(4):
            o += [f"s_add_u32 m0, s{sWStr}, {g*STAGE}"] + self.stage() + [f"s_add_u32 s{sOff}, s{sOff}, 8192", self.dummy(0), self.dummy(1)]
        o += self.consts()
        o += self.warm()
        for j in range(18):
            o.append(f"s_waitcnt vmcnt({24+17-j})")
            for i in range(4):
                o += scale(qd[j] + i, i)
            o.append(f"ds_write_b128 v{vAuxB}, {vr(qd[j],4)} offset:{(j>>1)*GRP+(j&1)*1024}")
        o += [f"v_add_u32 v{vTm}, {4*STAGE}, v{vK0}", f"s_add_u32 m0, s{sWStr}, {4*STAGE}", "s_waitcnt lgkmcnt(0)", "s_barrier"]
        o += [f"ds_read_b128 {ar(aK0+4*ks,4)}, v{vTm} offset:{ks*256}" for ks in range(4)]
        o += [qread(x, ks) for x in XS for ks in range(4)]
        o += ["s_cbranch_vccnz L_prepass", "L_prepass_ret:"]
        o += [kread(f) for f in range(8)]
        for n, x in enumerate(XS):
            o.append(f"s_waitcnt lgkmcnt({min(15, 24-4*n)})")
            o += mchain(x)
            if n >= 2:
                o += negate(XS[n - 2])
        o += [f"s_and_b32 s{sT0}, s{sW}, 1", f"v_mov_b32 v{vK}, v{vKb}"] + negate("b1") + negate("c")
        o += ["s_cbranch_vccnz L_fix0", "L_fix0r:", "s_waitcnt lgkmcnt(0)"]
        self.fix += ["L_fix0:"] + [f"v_accvgpr_read_b32 v{vM[x]+i}, a{aSave+n}" for n, x in enumerate(XS) for i in range(4)] + ["s_nop 1", "s_branch L_fix0r"]
        o += [qk("a0", f) for f in range(8)]
        o += ["s_nop 3", f"s_cmp_eq_u32 s{sT0}, 1", "s_cbranch_scc1 L_A85", "s_branch L_A0"]
        return o

    def warm(self):
        return []

    def prepass(self):
        a, m = vR, vD
        o = ["L_prepass:", f"v_bfe_u32 v{a}, v{vOst}, 4, 4", f"v_lshl_add_u32 v{a}, v{a}, 8, v{vK0}", f"v_add_u32 v{a+1}, 4096, v{a}"]
        o += [f"v_mov_b32 v{m+n}, 0xff800000" for n in range(5)]
        o += [f"s_lshl_b32 s{sT0}, s{sH}, 17", f"s_mov_b32 s{sT1}, 16", "L_prepass_loop:"]
        o += [f"buffer_load_dwordx4 {ar(aK+4*f,4)}, v{a+(f>>2)}, s[{SRD_K}:{SRD_K+3}], s{sT0} offen offset:{(f&3)*64}" for f in range(8)]
        o.append("s_waitcnt vmcnt(0) lgkmcnt(0)")
        o += [qk(x, f, True) for x in XS for f in range(8)]
        o += [f"v_max3_f32 v{m+n}, v{m+n}, v{vS[x]+2*i}, v{vS[x]+2*i+1}" for n, x in enumerate(XS) for i in range(4)]
        o += [f"s_add_u32 s{sT0}, s{sT0}, 8192", f"s_sub_u32 s{sT1}, s{sT1}, 1", f"s_cmp_lg_u32 s{sT1}, 0", "s_cbranch_scc1 L_prepass_loop"]
        for n in range(5):
            for sw in ("v_permlane16_swap_b32", "v_permlane32_swap_b32"):
                o += [f"v_mov_b32 v{a}, v{m+n}", f"{sw} v{m+n}, v{a}", f"v_max_f32 v{m+n}, v{m+n}, v{a}"]
            o += [f"v_sub_f32 v{m+n}, 0, v{m+n}", f"v_accvgpr_read_b32 v{a}, a{aSave+n}", f"v_accvgpr_write_b32 a{aSave+5+n}, v{a}",
                  f"v_accvgpr_write_b32 a{aSave+n}, v{m+n}"]
        o += [f"s_cmp_eq_u32 s{sH}, 0", "s_cbranch_scc1 L_prepass_ret", f"s_mov_b32 s{sH}, 0", "s_barrier", "s_branch L_start"]
        return o

    def fin(self):
        o = ["L_fin:", "s_nop 0", f"v_readfirstlane_b32 s{sT2}, v{vD}", "s_cbranch_vccnz L_done", f"s_cmp_lg_u32 s{sT2}, 0"]
        if not self.opt.get("noredo"):
            o.append("s_cbranch_scc1 L_redo")
        o.append("L_done:")
        if self.stamps:
            o += ["s_waitcnt vmcnt(0)", "s_memtime s[56:57]", "s_memrealtime s[58:59]", f"s_mov_b32 m0, s{sNst}", "s_waitcnt lgkmcnt(0)",
                  f"v_writelane_b32 v{vSt0}, s56, m0", f"v_writelane_b32 v{vSt0+1}, s58, m0",
                  f"s_mov_b32 s{sWS+2}, 0x100000", f"s_mov_b32 s{sWS+3}, 0x20000", f"s_lshl_b32 s{sT0}, s2, 2", f"s_add_u32 s{sT0}, s{sT0}, s{sW}",
                  f"s_lshl_b32 s{sT0}, s{sT0}, 9", f"v_bfe_u32 v{vTm}, v{vOst}, 4, 6", f"v_lshlrev_b32 v{vTm}, 2, v{vTm}",
                  f"buffer_store_dword v{vSt0}, v{vTm}, s[{sWS}:{sWS+3}], s{sT0} offen",
                  f"buffer_store_dword v{vSt0+1}, v{vTm}, s[{sWS}:{sWS+3}], s{sT0} offen offset:256"]
        o += ["L_end:", "s_endpgm", "L_redo:", "s_mov_b64 vcc, -1", f"s_mov_b32 s{sH}, 1", "s_waitcnt vmcnt(0) lgkmcnt(0)", "s_barrier", "s_branch L_start"]
        return o

    def build(self):
        A, B = self.period(2, "A"), self.period(20, "B")
        T = [self.trans(0), self.trans(1)]
        E = [self.tail(0), self.tail(1)]
        A[0].lab, A[85].lab = ["L_A0:"], ["L_A85:"]
        B[0].lab, B[77].lab, B[111].lab = ["L_B0:"], ["L_B77:"], ["L_B111:"]
        T[0][0].lab, E[0][0].lab = ["L_Ax:"], ["L_Bx:"]
        vq = []
        for g in range(4):
            vq += [(Op(o), g) for o in self.stage()] + [(Op("s_nop 0"), None)] * 2
        tr = [A * 7 + A[:85] + T[0] + B[111:] + B * 6 + B[:85] + E[0], A[85:] + A * 7 + T[1] + B[77:] + B * 6 + E[1]]
        insert_waits([(t, vq) for t in tr])
        seg = {}
        for n, G in (("A", A), ("B", B), ("T0", T[0]), ("T1", T[1]), ("E0", E[0]), ("E1", E[1])):
            ops = [o for g in G for o in g.ops()]
            seg[n] = check_hazards(ops, n, True)
            print(n, "gaps", len(G), "ops", len(ops), "nops", len(seg[n]) - len(ops), "over", sum(max(0, g.used() % 99 - 2) for g in G if g.mfma),
                  "vm", [g.vm for g in G if g.vm is not None], file=sys.stderr)
        lab = lambda s, l: [o.t for o in seg[s]].index(l)
        for a, b in ((seg["A"], seg["A"]), (seg["A"][:lab("A", "L_A85:")], seg["T0"]), (seg["A"], seg["T1"]), (seg["T0"], seg["B"][lab("B", "L_B111:"):]),
                     (seg["T1"], seg["B"][lab("B", "L_B77:"):]), (seg["B"], seg["B"]), (seg["B"], seg["E1"]),
                     (seg["B"][:[o.t for o in seg["B"]].index("s_cbranch_scc1 L_Bx") + 1], seg["E0"])):
            assert check_hazards(a[-14:] + b[:14], "seam") == 0
        fx = lambda l: [o.t for o in check_hazards([Op(t) for t in l], "s", True)]
        self.header()
        self.many(fx(self.setup() + self.start()))
        al = self.opt.get("al", 6)
        for n in ("A", "T1", "T0", "B", "E1", "E0"):
            if n in "AB":
                self.e(f".p2align {al}")
            self.many([o.t for o in seg[n]])
        self.many(fx(self.fin()) + self.fix + fx(self.prepass()))
        self.footer()
        return "\n".join(self.L) + "\n"


if __name__ == "__main__":
    out = sys.argv[1]
    kw = {}
    for a in sys.argv[2:]:
        k, v = a.split("=")
        kw[k] = int(v) if v.lstrip("-").isdigit() else v.replace("_", " ")
    open(out, "w").write(Gen(**kw).build())
```

```python
import re

REG = re.compile(r"\b([va])(?:(\d+)|\[(\d+):(\d+)\])")


def regs(s):
    out = []
    for m in REG.finditer(s):
        lo, hi = (int(m[2]), int(m[2])) if m[2] else (int(m[3]), int(m[4]))
        out += [f"{m[1]}{i}" for i in range(lo, hi + 1)]
    return out


class Op:
    def __init__(self, text, tag=None):
        self.t, self.tag = text, tag
        m = text.split()[0]
        self.m = m
        args = [a.strip() for a in text[len(m):].split(",")]
        self.c = set()
        if text.endswith(":") or m.startswith("."):
            self.k, w, r = "lab", [], []
        elif m.startswith("v_mfma"):
            self.k, w, r = "mfma", regs(args[0]), regs(args[1] + " " + args[2])
            self.c = set(regs(args[3]))
        elif m.startswith("ds_read"):
            self.k, w, r = "dsr", regs(args[0]), regs(args[1])
        elif m.startswith("ds_write"):
            self.k, w, r = "dsw", [], regs(text[len(m):])
        elif m == "buffer_load_dword":
            self.k, w, r = "vm", [], regs(args[1])
        elif m.startswith("buffer_load") and not text.rstrip().endswith("lds"):
            self.k, w, r = "vml", regs(args[0]), regs(args[1])
        elif m.startswith("buffer_"):
            self.k, w, r = "vm", [], regs(text[len(m):])
        elif m.startswith("v_permlane"):
            self.k = "valu"
            w = r = regs(text[len(m):])
        elif m.startswith("v_"):
            self.k = "exp" if m.startswith(("v_exp", "v_rcp")) else "valu"
            w, r = regs(args[0]), regs(",".join(args[1:]))
            if m.startswith("v_writelane"):
                r = r + w
        else:
            self.k, w, r = "sc", [], []
        self.w, self.r = set(w), set(r)


class Gap:
    def __init__(self, mfma=None):
        self.mfma = Op(mfma) if mfma else None
        self.lab, self.sc, self.mem, self.valu, self.post = [], [], [], [], []
        self.lg = self.vm = None
        self.bar = None
        self.need = None
        self.pre = []
        self.aft = []
        self.full = False
        self.id = None

    def used(self):
        n = sum(2 if o.k == "exp" else 1 for o in self.valu)
        n += sum(2 if o.k == "vm" or o.m == "ds_write_b128" else 1 for o in self.mem)
        return n + (2 if self.bar else 0) + (99 if self.full else 0)

    def add(self, op):
        (self.sc if op.k in ("sc", "lab") else self.mem if op.k in ("dsr", "dsw", "vm", "vml") else self.valu).append(op)

    def ops(self):
        out = [Op(l) for l in self.lab]
        if self.mfma:
            out.append(self.mfma)
        out += self.pre
        w = []
        if self.vm is not None:
            w.append(f"vmcnt({self.vm})")
        if self.lg is not None:
            w.append(f"lgkmcnt({self.lg})")
        if w:
            out.append(Op("s_waitcnt " + " ".join(w)))
        if self.bar:
            out.append(Op("s_barrier"))
        return out + self.aft + self.sc + self.mem + self.valu + self.post


def cost(op):
    return 2 if op.k in ("exp", "vm") or op.m == "ds_write_b128" else 1


def place(G, text, lo, hi, cap=2, tag=None):
    op = Op(text, tag)
    hi = min(hi, len(G) - 1)
    assert lo <= hi, (text, lo, hi)
    if op.k == "sc":
        for n in range(9):
            for g in range(lo, hi + 1):
                if len(G[g].sc) <= n and G[g].bar is None and not G[g].full:
                    G[g].add(op)
                    return g
    for c in range(cap, 99):
        for g in range(lo, hi + 1):
            if G[g].used() + cost(op) <= c:
                G[g].add(op)
                return g


def gcost(g, extra=()):
    nv = ne = nm = npk = 0
    ns = 1 if g.bar else 0
    fix = 0.0
    for o in g.sc + g.mem + g.valu + list(extra):
        if o.k == "exp":
            ne += 1
        elif o.m.startswith("v_pk"):
            npk += 1
        elif o.k == "valu":
            nv += 1
        elif o.k == "dsr":
            nm += 1
        elif o.k in ("vm", "vml", "dsw"):
            nm += 2
            fix += 12 if o.m == "ds_write_b128" else 4
        elif o.k == "sc":
            ns += 1
    if not g.mfma:
        return 4 * (nv + npk + nm + ns) + 12 * ne + fix
    if npk:
        return 13 + 4 * (nv + npk) + 10 * ne + fix
    u = 2 * ne + nv + nm + max(0, ns - 1) + (2 if g.bar else 0)
    c = 0.5 * u if u <= 1 else (2.5 if nv == 2 else 0.7) if u == 2 else 2.5 + 4 * (u - 2) - (1.5 if nv < 2 else 0)
    return c + fix


def chain(G, ops, lo, hi, late=0.0, run=7):
    hi = min(hi, len(G) - 1)
    ol = [(Op(x[0], x[4] if len(x) > 4 else None), x[1], x[2] if len(x) > 2 else 0, x[3] if len(x) > 3 else hi) for x in ops]
    rank = lambda o: 0 if o.k == "sc" else 1 if o.k in ("dsr", "dsw", "vm", "vml") else 2
    n, INF = len(ol), 1e18
    W = hi - lo + 1
    base = [gcost(G[lo + g]) for g in range(W)]
    best = [[INF] * W for _ in range(n + 1)]
    arg = [[None] * W for _ in range(n + 1)]
    best[0] = [0.0] * W
    for i in range(1, n + 1):
        for g in range(W):
            if g and best[i][g - 1] < INF:
                best[i][g], arg[i][g] = best[i][g - 1], arg[i][g - 1]
            gg = G[lo + g]
            if gg.full:
                continue
            for j in range(i - 1, max(-1, i - 1 - run), -1):
                o, d, olo, ohi = ol[j]
                if not olo <= lo + g <= ohi or (o.k == "sc" and gg.bar):
                    break
                pg = g - max(1, d)
                prev = 0.0 if j == 0 else (best[j][pg] if pg >= 0 else INF)
                if prev < INF and d >= 0:
                    c = prev + gcost(gg, [x[0] for x in ol[j:i]]) - base[g] + (1e-3 + late) * g * (i - j)
                    if c < best[i][g]:
                        best[i][g], arg[i][g] = c, (j, g, pg)
                if j == 0 or d > 0 or rank(o) < rank(ol[j - 1][0]):
                    break
    assert best[n][W - 1] < INF, ("chain does not fit", ops[0], lo, hi)
    res, i, g = [0] * n, n, W - 1
    while i:
        j, at, pg = arg[i][g]
        for k in range(j, i):
            res[k] = lo + at
        i, g = j, pg
    for x, g in zip(ol, res):
        G[g].add(x[0])
    return res


def insert_waits(traces, batch=7):
    changed = True
    while changed:
        changed = False
        for tr, vq0 in traces:
            lq, vq = [], list(vq0)
            nbar = 0
            for n, g in enumerate(tr):
                use = [o for o in g.mem + g.valu]
                if n + 1 < len(tr) and tr[n + 1].mfma:
                    nx = tr[n + 1].mfma
                    use.append(nx)
                    for o in g.mem:
                        assert not (o.w & (nx.r | nx.c | nx.w)), ("load feeds next mfma", o.t)
                touched = set().union(*[o.r | o.w | o.c for o in use]) if use else set()
                k = -1
                for i, (o, at) in enumerate(lq):
                    if o.w & touched or (g.bar and o.tag != "priv") or (g.need == "ds" and o.tag == "x"):
                        k = i
                if k >= 0:
                    while k + 1 < len(lq) and lq[k + 1][1] <= n - batch:
                        k += 1
                    c = min(len(lq) - 1 - k, 15)
                    if g.lg is None or c < g.lg:
                        g.lg, changed = c, True
                if g.lg is not None:
                    lq = lq[max(0, len(lq) - g.lg):] if g.lg else []
                k = -1
                for i, (o, st) in enumerate(vq):
                    if o.w & touched or (g.bar == "ring" and st == nbar):
                        k = i
                if k >= 0:
                    c = len(vq) - 1 - k
                    if g.vm is None or c < g.vm:
                        g.vm, changed = c, True
                if g.vm is not None:
                    vq = vq[max(0, len(vq) - g.vm):] if g.vm else []
                if g.bar == "ring":
                    nbar += 1
                seen = set()
                for o in g.mem:
                    assert not (seen & (o.r | o.w)), ("same-gap load use", o.t)
                    seen |= o.w
                    if o.k in ("dsr", "dsw"):
                        lq.append((o, n))
                    else:
                        vq.append((o, nbar + 3 if o.tag == "stage" else None))
                for o in g.valu:
                    assert not (seen & (o.r | o.w)), ("same-gap load use", o.t)
                assert len(vq) <= 63


def check_hazards(ops, name, fix=False):
    pos, hist, bad, out = 0, [], 0, []
    for o in ops:
        if o.k == "lab":
            out.append(o)
            continue
        short = 0
        for p, q in hist:
            d, need = pos - p - 1, 0
            if q.k == "mfma":
                if o.k == "mfma":
                    if q.w & o.r:
                        need = 8
                    elif q.w & o.c and q.w != o.c:
                        need = 6
                elif o.k != "sc" and q.w & (o.r | o.w):
                    need = 8
                if o.k in ("valu", "exp") and q.c & o.w:
                    need = max(need, 3)
            elif q.k in ("valu", "exp"):
                if o.k == "mfma" and q.w & (o.r | o.c):
                    need = 2
                elif o.m.startswith("v_permlane") and q.w & o.r:
                    need = 2
                elif q.k == "exp" and o.k in ("valu", "exp", "dsw", "dsr", "vm") and q.w & o.r:
                    need = 1
            elif q.k == "vm" and "store" in q.m and o.k in ("valu", "exp", "mfma") and q.r & o.w:
                need = 2
            elif q.k == "sc" and " m0," in q.t and o.k == "vm" and o.t.endswith("lds"):
                need = 1
            if d < need:
                bad += 1
                short = max(short, need - d)
                if bad < 8 and not fix:
                    print(f"HAZARD {name}: [{q.t}] -> [{o.t}] dist {d} need {need}")
        if short and fix:
            out.append(Op(f"s_nop {short-1}"))
            pos += short
        out.append(o)
        hist.append((pos, o))
        pos += int(o.t.split()[1]) + 1 if o.m == "s_nop" else 1
        hist = [h for h in hist if pos - h[0] <= 10]
    return out if fix else bad
```

```python
import struct
import sys
from sched import Op, Gap, place, chain, gcost, insert_waits, check_hazards

NAME = "standalone__mha_softmax__near_ridge"

WSTR = 4128
STAGE = 4 * WSTR
RING = 5 * STAGE
GRP = 2176
W0 = RING
WREG = 9 * GRP
DUMMY = W0 + 4 * WREG
LX = DUMMY + 2048
FLAG = LX + 256
LDS_BYTES = FLAG + 64
assert LDS_BYTES <= 163840

sW = 3
SRD_Q, SRD_K, SRD_V, SRD_O = 12, 16, 20, 24
sC = 28
sRd, sOff, sWStr, sT, sH, sBig = 30, 31, 32, 33, 34, 35
sQm0, sQoff, sRel, sDum, sWbase = 36, 37, 38, 39, 40
sT0, sT1, sT2, sLim, sMask, sM0s, sNst = 41, 42, 43, 44, 45, 46, 47
sF = 48
sWS = 52

vOst, vDMA, vKb, vVb, vK, vV, vQa, vQc, vStA, vStC, vAux, vAuxB, vXc, vLx, vChk, vK0 = range(16)
XS = ["a0", "a1", "b0", "b1", "c"]
vS = {x: 16 + 8 * i for i, x in enumerate(XS)}
vP = {x: 56 + 4 * i for i, x in enumerate(XS)}
vM = {x: 76 + 4 * i for i, x in enumerate(XS)}
vO = {x: 96 + 32 * i for i, x in enumerate(XS[:4])}
vR, vTm, vL, vDead, vSt0, vD = 224, 228, 232, 236, 238, 240
aO = 0
aQ = {x: 32 + 16 * i for i, x in enumerate(XS)}
aK, aV = 112, 144
aL = {x: 176 + 4 * i for i, x in enumerate(XS)}
aOne, aK0, aSave, aStR = 196, 200, 216, 226
MF = "v_mfma_f32_16x16x32_bf16"
SEQ = [("qk", "a1", 0), ("pv", "b", -1), ("qk", "c", 0), ("qk", "b0", 0), ("pv", "a", 0), ("qk", "b1", 0), ("pv", "c", 0),
       ("qk", "a0", 1), ("qk", "a1", 1), ("pv", "b", 0), ("qk", "b0", 1), ("qk", "b1", 1), ("pv", "a", 1), ("qk", "a0", 2)]
UNITS = [("a0", 0), ("a1", 0), ("c", 0), ("b0", 0), ("b1", 0), ("a0", 1), ("a1", 1), ("b0", 1), ("b1", 1)]


def f2u(x):
    return struct.unpack("<I", struct.pack("<f", x))[0]


def vr(b, n=1):
    return f"v{b}" if n == 1 else f"v[{b}:{b+n-1}]"


def ar(b, n=1):
    return f"a{b}" if n == 1 else f"a[{b}:{b+n-1}]"


def qk(x, f, zero=False):
    kt, ks = f >> 2, f & 3
    d = vr(vS[x] + 4 * kt, 4)
    c = d if ks else ("0" if zero else vr(vM[x], 4))
    return f"{MF} {d}, {ar(aK+4*f,4)}, {ar(aQ[x]+4*ks,4)}, {c}"


def pvgroup(X, first):
    xs = [X + "0", X + "1"] if X in "ab" else [X]
    r = [f"{MF} {ar(aL[x],4)}, {ar(aOne,4)}, {vr(vP[x],4)}, {'0' if first else ar(aL[x],4)}" for x in xs]
    for dt in range(8):
        for x in (xs if dt % 2 == 0 else xs[::-1]):
            o = ar(aO + 4 * dt, 4) if x == "c" else vr(vO[x] + 4 * dt, 4)
            r.append(f"{MF} {o}, {ar(aV+4*dt,4)}, {vr(vP[x],4)}, {'0' if first else o}")
    return r


def mchain(x):
    d = vr(vM[x], 4)
    return [f"{MF} {d}, {ar(aK0+4*ks,4)}, {ar(aQ[x]+4*ks,4)}, {d if ks else '0'}" for ks in range(4)]


def negate(x):
    return [f"v_sub_f32 v{vM[x]+i}, 0, v{vM[x]+i}" for i in range(4)]


def kread(f):
    return f"ds_read_b128 {ar(aK+4*f,4)}, v{vK} offset:{(f>>2)*1024+(f&3)*256}"


def vread(dt, s):
    return f"ds_read_b64_tr_b16 {ar(aV+4*dt+2*s,2)}, v{vV} offset:{2048+s*1024+(dt>>1)*256+(dt&1)*32}"


def qread(x, ks):
    a, b = (vQc, 0) if x == "c" else (vQa, XS.index(x) * 2 * GRP)
    return f"ds_read_b128 {ar(aQ[x]+4*ks,4)}, v{a} offset:{b+ks*256}"


def scale(d, n, pk=False):
    t = vTm + 2 * (n & 1)
    mul = [f"v_pk_mul_f32 {vr(t,2)}, {vr(t,2)}, s[{sC}:{sC+1}]"] if pk else [f"v_mul_f32 v{t+i}, s{sC}, v{t+i}" for i in range(2)]
    return [f"v_lshlrev_b32 v{t}, 16, v{d}", f"v_and_b32 v{t+1}, s{sMask}, v{d}"] + mul + [f"v_cvt_pk_bf16_f32 v{d}, v{t}, v{t+1}"]


def isize(op):
    if op.endswith(":"):
        return 0
    m = op.split()[0]
    if m.startswith(("v_mfma", "ds_", "buffer_", "v_cvt_pk", "v_pk_", "v_accvgpr", "v_lshl_add", "s_mem", "v_or3", "v_add3", "v_bfe", "v_writelane", "v_cmp")):
        return 8
    if m.startswith(("s_waitcnt", "s_barrier", "s_cbranch", "s_branch", "s_nop")):
        return 4
    for a in op[len(m):].split(","):
        try:
            if not -16 <= int(a.strip(), 0) <= 64:
                return 8
        except ValueError:
            pass
    return 4


def idx(G, *key):
    return [g.id for g in G].index(key)


class Gen:
    def __init__(self, ld="nt", st="sc0 sc1", stamps=0, lim=40, st0=22, **opt):
        self.L, self.ld, self.st, self.stamps, self.lim, self.st0, self.opt = [], ld, st, stamps, lim, st0, opt
        self.fix = []

    def e(self, s):
        self.L.append(s if s.endswith(":") else "    " + s)

    def many(self, lst):
        for s in lst:
            self.e(s)

    def dma(self, srd, soff, off):
        o = f" offset:{off}" if off else ""
        return f"buffer_load_dwordx4 v{vDMA}, s[{srd}:{srd+3}], s{soff} offen{o} {self.ld} lds"

    def stage(self):
        return [self.dma(SRD_K, sOff, 0), self.dma(SRD_K, sOff, 1024), self.dma(SRD_V, sOff, 2048), self.dma(SRD_V, sOff, 3072)]

    def dummy(self, i):
        return f"buffer_load_dword v{vDead+i}, v{vOst}, s[{SRD_Q}:{SRD_Q+3}], s{sBig} offen"

    def store(self, d, soff, off):
        o = f" offset:{off}" if off else ""
        return f"buffer_store_dwordx4 {vr(d,4)}, v{vOst}, s[{SRD_O}:{SRD_O+3}], s{soff} offen{o} {self.st}"

    def barrier(self, g, kind):
        g.bar = kind
        if self.stamps:
            g.lg = 0
            g.pre = [Op("s_memtime s[56:57]"), Op("s_memrealtime s[58:59]")]
            g.aft = [Op(t) for t in (f"s_mov_b32 s{sM0s}, m0", f"s_mov_b32 m0, s{sNst}", f"s_add_u32 s{sNst}, s{sNst}, 1", "s_nop 3",
                                     f"v_writelane_b32 v{vSt0}, s56, m0", f"v_writelane_b32 v{vSt0+1}, s58, m0", f"s_mov_b32 m0, s{sM0s}", "s_nop 0")]

    def period(self, t0, flav):
        G = []
        for kind, x, d in SEQ:
            t = t0 + d
            ms = [qk(x, f) for f in range(8)] if kind == "qk" else pvgroup(x, flav == "T" and (t == 16 or (x == "c" and t == 17)))
            for i, m in enumerate(ms):
                G.append(Gap(m if t < 32 else None))
                G[-1].id = (kind, x, t, i)
        assert len(G) == 153
        for k, (x, d) in enumerate(UNITS):
            if t0 + d < 32:
                for i in range(8):
                    G[17 * k + 2 * i].add(Op(f"v_exp_f32 v{vS[x]+i}, v{vS[x]+i}"))
                for j in range(4):
                    G[17 * k + 4 * j + 3].add(Op(f"v_cvt_pk_bf16_f32 v{vP[x]+j}, v{vS[x]+2*j}, v{vS[x]+2*j+1}"))
        for h, (B, pv0, pa, k0, kn, ck) in enumerate(((9, 8, 42, 60, 77, 84), (86, 93, 127, 119, 145, 152))):
            t = t0 + h
            if t >= 32:
                continue
            self.barrier(G[B], "ring")
            G[B].id2 = ("bar", t)
            G[ck].full = flav in "AB"
            g = B
            if flav == "T" and t == 16:
                X = B + (13 if h == 0 else 12)
                par = t0 & 1
                self.xwrite(G, par, B + 1, X - 3)
                self.barrier(G[X], "x")
                g = self.xread(G, par, X + 1, X + 6) + 6
                G[g + 1].need = "ds"
                self.xpos = G[g + 1]
            if flav != "E":
                for o in self.stage():
                    g = place(G, o, g + 1, g + 6, tag="stage")
            if flav == "A":
                r0 = chain(G, [(f"s_add_u32 s{sRel}, s{sRel}, {GRP}", 1), (f"s_cmp_lt_u32 s{sRel}, {WREG}", 1),
                               (f"s_cselect_b32 s{sT1}, s{sRel}, s{sDum}", 1), (f"v_add_u32 v{vAux}, s{sT1}, v{vAuxB}", 0)] +
                           [(f"ds_read_b128 {vr(vD+4*p,4)}, v{vAux} offset:{1024*p}", 0) for p in range(2)], B + 1, B + 14)
                assert r0[2] <= g
            gv = 0
            for dt in range(8):
                for s in range(2):
                    gv = max(gv, place(G, vread(dt, s), max(B + 1, pv0 + 3 + 2 * dt), pa + 2 * dt - 4))
            if t + 1 >= 32:
                continue
            gk = 0
            for f in range(8):
                gk = max(gk, place(G, kread(f), k0 + f, kn + f - 7))
            ops = [(f"s_add_u32 s{sOff}, s{sOff}, 8192", 1)]
            adv = [(f"s_add_u32 m0, s{sRd}, s{sWStr}", 1), (f"s_add_u32 s{sRd}, s{sRd}, {STAGE}", 1),
                   (f"s_cmp_eq_u32 s{sRd}, {RING}", 1), (f"s_cselect_b32 s{sRd}, 0, s{sRd}", 1),
                   (f"v_add_u32 v{vV}, s{sRd}, v{vVb}", 0, gv), (f"v_add_u32 v{vK}, s{sRd}, v{vKb}", 0, gk)]
            side = None
            if flav == "A":
                ops += [(f"s_cmp_ge_u32 s{sT}, 6", 1), (f"s_cselect_b32 m0, s{sQm0}, {DUMMY}", 1),
                        (f"s_cselect_b32 s{sT0}, s{sQoff}, s{sBig}", 1),
                        (self.dma(SRD_Q, sT0, 0), 1), (self.dma(SRD_Q, sT0, 1024), 1),
                        (f"s_add_u32 s{sQm0}, s{sQm0}, {GRP}", 1), (f"s_add_u32 s{sQoff}, s{sQoff}, 2048", 1)]
                side = []
                for p in range(2):
                    for i in range(4):
                        side += [(o, 0) for o in scale(vD + 4 * p + i, i)]
                    side.append((f"ds_write_b128 v{vAux}, {vr(vD+4*p,4)} offset:{1024*p}", 0))
            elif flav == "B":
                ops += [(f"v_add_u32 v{vAux}, {GRP}, v{vAux}", 0)]
                ops += [(f"ds_read_b128 {vr(vD+4*p,4)}, v{vAux} offset:{1088*p}", 0, 0, 999, "priv") for p in range(2)]
                ops += [(f"s_add_u32 s{sRel}, s{sRel}, 2048", 1), (f"s_cmp_lt_u32 s{sRel}, 18432", 1),
                        (f"s_cselect_b32 s{sT0}, s{sRel}, s{sBig}", 1),
                        (self.store(vD, sT0, 0), 5), (self.store(vD + 4, sT0, 1024), 1)]
            elif flav == "T":
                ops += [(self.dummy(0), 1), (self.dummy(1), 1)]
            if flav == "E":
                ops = []
            lo = 111 if h == 1 and flav == "B" else g + 1
            if flav == "T" and t == 17 and h == 1:
                ops, adv = [], []
            r = chain(G, ops + adv, lo, (76 if h == 0 else ck - 2)) if ops + adv else None
            if side and not self.opt.get("noscale"):
                chain(G, side, r0[-1] + 7, ck - self.opt.get('sidehi', 5))
            if flav in "AB":
                place(G, f"s_sub_u32 s{sT}, s{sT}, 1", ck - 1, ck - 1)
                G[ck].sc.append(Op(f"s_cbranch_scc1 L_{flav}x" if h == 0 else f"s_cbranch_scc0 L_{flav}0"))
        return G

    def xwrite(self, G, par, lo, hi):
        o = [(f"ds_write_b128 v{vXc}, {ar(aO+16*(1-par)+4*j,4)} offset:{(1-par)*WSTR+1024*j}", 0) for j in range(4)]
        o.append((f"ds_write_b32 v{vLx}, {ar(aL['c'])} offset:{(1-par)*64}", 0))
        return chain(G, o, lo, hi)[-1]

    def xread(self, G, par, lo, hi):
        o = [(f"ds_read_b128 {vr(vD+4*j,4)}, v{vXc} offset:{par*WSTR+1024*j}", 0, 0, 999, "x") for j in range(4)]
        o.append((f"ds_read_b32 v{vL}, v{vLx} offset:{par*64}", 0, 0, 999, "x"))
        return chain(G, o, lo, hi)[-1]

    def norm_c(self, par, pk=False):
        r = vL + 2
        o = [f"v_accvgpr_read_b32 v{vL+1}, {ar(aL['c'])}", f"v_add_f32 v{vL}, v{vL}, v{vL+1}", f"v_rcp_f32 v{r}, v{vL}",
             f"v_add_f32 v{vChk}, v{vChk}, v{vL}"]
        for j in range(4):
            d = vD + 4 * j
            o += [f"v_accvgpr_read_b32 v{vTm+i}, {ar(aO+16*par+4*j+i)}" for i in range(4)]
            if pk:
                o += [f"v_pk_add_f32 {vr(d+i,2)}, {vr(d+i,2)}, {vr(vTm+i,2)}" for i in (0, 2)] + self.pkmul(d, r)
            else:
                o += [f"v_add_f32 v{d+i}, v{d+i}, v{vTm+i}" for i in range(4)] + [f"v_mul_f32 v{d+i}, v{d+i}, v{r}" for i in range(4)]
            o += self.pack(d, vStC, (4 * par + j) * 32)
        return [(t, 0) for t in o]

    def pkmul(self, d, r):
        return [f"v_pk_mul_f32 {vr(d+i,2)}, {vr(d+i,2)}, {vr(r,2)} op_sel_hi:[1,0]" for i in (0, 2)]

    def pack(self, d, addr, off):
        return [f"v_cvt_pk_bf16_f32 v{d}, v{d}, v{d+1}", f"v_cvt_pk_bf16_f32 v{d+1}, v{d+2}, v{d+3}", f"ds_write_b64 v{addr}, {vr(d,2)} offset:{off}"]

    def norm(self, G, X, t, tn, lo, hi, nb=1):
        p = idx(G, "pv", X, t, 0)
        n = idx(G, "pv", X, tn, 0) if tn else 9999
        o = [(f"v_accvgpr_read_b32 v{vR+2*q+1}, {ar(aL[X+str(q)])}", 0) for q in range(2)]
        for q in range(2):
            o += [(f"v_rcp_f32 v{vR+2*q}, v{vR+2*q+1}", 0), (f"v_add_f32 v{vChk}, v{vChk}, v{vR+2*q+1}", 0)]
        g = chain(G, o, max(lo, p + 6), max(lo, p + 6) + 10)[-1]
        o = []
        per = 8 // nb
        for k in range(nb):
            dts = range(per * k, per * k + per)
            g = max(g + 1, p + 3 + 2 * dts[-1])
            while G[g].valu or G[g].bar:
                g += 1
            for dt in dts:
                for q in range(2):
                    x = X + str(q)
                    for s in self.pkmul(vO[x] + 4 * dt, vR + 2 * q):
                        G[g].add(Op(s))
                    o += [(s, 0, g, n + 2 * dt) for s in self.pack(vO[x] + 4 * dt, vStA, XS.index(x) * 2 * GRP + dt * 32)]
        return g, o

    def trans(self, par):
        if par == 0:
            G = self.period(14, "T")[85:] + self.period(16, "T")[:111]
            ins = {"a0": ("pv", "a", 15), "a1": ("qk", "a0", 16), "c": ("qk", "a1", 16), "b0": ("pv", "b", 15), "b1": ("qk", "c", 16)}
        else:
            G = self.period(15, "T") + self.period(17, "T")[:77]
            ins = {"a0": ("qk", "b1", 15), "a1": ("pv", "c", 15), "c": ("qk", "a0", 16), "b0": ("qk", "a1", 16), "b1": ("pv", "b", 15)}
        for x, key in ins.items():
            i = idx(G, *key, 0)
            new = [Gap(m) for m in mchain(x)]
            for n, g in enumerate(new):
                g.id = ("m", x, 16, n)
            G[i:i] = new
        b15 = [getattr(g, "id2", None) for g in G].index(("bar", 15))
        b16 = [getattr(g, "id2", None) for g in G].index(("bar", 16))
        m0 = idx(G, "m", "a0", 16, 0)
        chain(G, [(f"ds_read_b128 {ar(aK0+4*ks,4)}, v{vK0} offset:{ks*256}", 0) for ks in range(4)], b15 + 1, m0 - 8)
        for x in ins:
            last = 15 if (x != "c" or par) else 14
            lo = idx(G, "qk", x, last, 7) if ("qk", x, last, 7) in [g.id for g in G] else 0
            m = idx(G, "m", x, 16, 0)
            free = b16 - 1 if x == "c" else idx(G, "pv", x[0], 15, 0) + 16
            chain(G, [(qread(x, ks), 0) for ks in range(4)], lo, min(m - 8, free))
            nq = idx(G, "qk", x, 17 if (x == "c" and par) else 16, 0)
            lab = f"L_fix{par}{x}"
            r = chain(G, [(o, 0) for o in negate(x)], m + 8, nq - 2)
            G[r[-1]].post += [Op(f"s_cbranch_vccnz {lab}"), Op(f"{lab}r:")]
            self.fix += [f"{lab}:"] + [f"v_accvgpr_read_b32 v{vM[x]+i}, a{aSave+5+XS.index(x)}" for i in range(4)] + ["s_nop 1", f"s_branch {lab}r"]
        ga, oa = self.norm(G, "a", 15, 16, 0, 0)
        gb, ob = self.norm(G, "b", 15, 16, ga, 0)
        xp = G.index(self.xpos)
        todo = [(oa, ga, len(G)), (self.norm_c(par), xp, idx(G, "pv", "c", 16 + par, 0) - 1), (ob, gb, len(G))]
        for k in ((0, 1, 2), (0, 2, 1))[par]:
            chain(G, *todo[k])
        k = (self.st0 - 17 + (1 - par))
        chain(G, [(f"v_accvgpr_read_b32 v{vAux}, a{aStR}", 0), (f"v_subrev_u32 v{vAux}, {k*GRP}, v{vAux}", 0),
                  (f"s_mov_b32 s{sRel}, {(-k*2048) & 0xffffffff}", 0), (f"s_mov_b32 s{sT}, 13", 1)], 2, 60)
        G[-1].post.append(Op(f"s_branch L_B{111 if par == 0 else 77}"))
        txt = [o.t for g in G for o in g.ops()]
        for n, x in enumerate(XS[:4]):
            wr = [i for i, t in enumerate(txt) if t.startswith(f"ds_write_b64 v{vStA},") and int(t.split(":")[-1]) // (2 * GRP) == n]
            assert len(wr) == 8 and min(wr) > max(txt.index(qread(x, ks)) for ks in range(4)), x
        return G

    def tail(self, par):
        seq = [[("qk", "a1"), ("pv", "b"), ("qk", "b0"), ("qk", "b1")],
               [("qk", "c"), ("pv", "b"), ("qk", "a1"), ("qk", "b0"), ("pv", "c"), ("qk", "b1")]][par] + [("pv", x) for x in XS[:4]]
        G, at = [], {}
        for kind, x in seq:
            at[kind, x] = len(G)
            G += [Gap(m) for m in ([qk(x, f) for f in range(8)] if kind == "qk" else pvgroup(x, False))]
        at["qk", "a0"] = -8
        nm = len(G)
        G += [Gap() for _ in range(90)]
        B = 9 if par else 1
        self.barrier(G[B], "ring")
        X = B + 54
        self.barrier(G[X], "x")
        o = []
        for x in [["a0", "a1", "b0", "b1"], ["a0", "c", "a1", "b0", "b1"]][par]:
            q, hi = at["qk", x], at["pv", x] - 2
            for j in range(4):
                lo = q + 8 + 4 * (j >> 1)
                o += [(f"v_exp_f32 v{vS[x]+i}, v{vS[x]+i}", 0, lo, hi) for i in (2 * j, 2 * j + 1)]
                o += [(f"v_cvt_pk_bf16_f32 v{vP[x]+j}, v{vS[x]+2*j}, v{vS[x]+2*j+1}", 1, max(lo, 26 if x[0] == "b" else 0), hi)]
        chain(G, o, 0, nm, late=0.02)
        chain(G, [(vread(dt, s), 0, max(B + 1, 11 + 2 * dt), 36 + dt) for dt in range(8) for s in range(2)], B + 1, nm)
        self.xwrite(G, par, at["pv", "c"] + 12 if par else B + 1, X - 2)
        gx = self.xread(G, par, X + 1, X + 4)
        aC, gC = vS["c"], vS["c"] + 1
        t = vS["c"] + 2
        chain(G, [(s, 0) for s in (f"v_accvgpr_read_b32 v{vAux}, a{aStR}", f"s_lshr_b32 s{sT1}, s{sW}, 1", f"s_mul_i32 s{sT2}, s{sT1}, {2*WREG}",
                                   f"v_bfe_u32 v{t}, v{vOst}, 7, 3", f"v_and_b32 v{t+1}, 0x70, v{vOst}", f"v_mul_u32_u24 v{aC}, 272, v{t}",
                                   f"v_lshl_add_u32 v{gC}, v{t}, 8, v{t+1}", f"v_add3_u32 v{aC}, v{aC}, v{t+1}, s{sT2}",
                                   f"v_add_u32 v{aC}, {W0+8*GRP+128*par}, v{aC}", f"s_mul_i32 s{sT1}, s{sT1}, 36864",
                                   f"s_add_u32 s{sT1}, s{sT1}, {73728+16384+128*par}")], at["pv", "c"] if par else 2, at["pv", "a0"] + 8)

        def norm(x):
            p, r = at["pv", x], vR + 2 * (XS.index(x) & 1)
            o = [(f"v_accvgpr_read_b32 v{r+1}, {ar(aL[x])}", 0, p + 5), (f"v_rcp_f32 v{r}, v{r+1}", 0), (f"v_add_f32 v{vChk}, v{vChk}, v{r+1}", 0)]
            o += [(s, -1 if dt + i else 1, p + 8) for dt in range(8) for i, s in enumerate(self.pkmul(vO[x] + 4 * dt, r))]
            return o + [(s, 0) for dt in range(8) for s in self.pack(vO[x] + 4 * dt, vStA, XS.index(x) * 2 * GRP + dt * 32)]

        def rd(x):
            if x == "c":
                return [(f"ds_read_b128 {vr(vD+4*j,4)}, v{aC} offset:{j*GRP}", 0, 0, 999, "priv") for j in range(2)]
            return [(f"ds_read_b128 {vr(vO[x]+4*j,4)}, v{vAux} offset:{(2*par+4*XS.index(x)+j)*1088}", 0, 0, 999, "priv") for j in range(4)]

        def st(x):
            if x == "c":
                return [(self.store(vD + 4 * j, sT1, 2048 * j).replace(f"v{vOst},", f"v{gC},"), 1) for j in range(2)]
            return [(f"s_mov_b32 s{sT0}, {73728+(2*par+4*XS.index(x))*1024}", 0)] + [(self.store(vO[x] + 4 * j, sT0, j * 1024), 1 if j else 0) for j in range(4)]

        nc = self.norm_c(par, True)
        nc[0] = (nc[0][0], 0, gx + 5)
        flag = [(s, 0) for s in (f"v_cmp_ngt_f32 s[{sF}:{sF+1}], s{sLim}, v{vChk}", f"s_lshl_b32 s{sT2}, s{sW}, 2", f"v_mov_b32 v{vTm+2}, {FLAG}",
                                 f"v_add_u32 v{vTm}, s{sT2}, v{vTm+2}", f"s_cmp_lg_u64 s[{sF}:{sF+1}], 0", f"s_cselect_b32 s{sT2}, 1, 0",
                                 f"v_mov_b32 v{vTm+1}, s{sT2}", f"ds_write_b32 v{vTm}, v{vTm+1}")]
        if par:
            o = nc + rd("c") + norm("a0") + st("c") + rd("a0") + norm("a1") + st("a0") + rd("a1") + norm("b0") + st("a1")
        else:
            o = norm("a0") + rd("a0") + nc + st("a0") + rd("c") + norm("a1") + st("c") + rd("a1") + norm("b0") + st("a1")
        o += rd("b0") + norm("b1") + st("b0") + rd("b1") + flag + st("b1")
        g = chain(G, o, at["pv", "a0"], len(G) - 4, run=20)[-1] + 1
        self.barrier(G[g], "x")
        G[g].add(Op(f"ds_read_b128 {vr(vD,4)}, v{vTm+2}"))
        G[g + 1].valu += [Op(f"v_or3_b32 v{vD}, v{vD}, v{vD+1}, v{vD+2}"), Op(f"v_or_b32 v{vD}, v{vD}, v{vD+3}")]
        G[g + 1].post += [Op(s) for s in self.fin(par)]
        return G[:g + 2]

    def header(self):
        for line in open(f"cdna_kernels/{NAME}.s.ref").read().split("\n"):
            if line.startswith("; @launch"):
                break
            self.L.append(line)
        self.L += [f"; @launch grid=(256,1,1) block=(256,1,1) lds={LDS_BYTES}", '.amdgcn_target "amdgcn-amd-amdhsa--gfx950"', ".text",
                   f".globl {NAME}_kernel", ".p2align 12", ".p2align 8", f".type {NAME}_kernel,@function", f"{NAME}_kernel:"]

    def footer(self):
        self.L += ['.section .rodata,"a"', ".p2align 6", f".amdhsa_kernel {NAME}_kernel", "  .amdhsa_next_free_vgpr 512",
                   "  .amdhsa_next_free_sgpr 102", "  .amdhsa_accum_offset 256", "  .amdhsa_group_segment_fixed_size 0",
                   "  .amdhsa_kernarg_size 48", "  .amdhsa_user_sgpr_count 2", "  .amdhsa_user_sgpr_kernarg_segment_ptr 1",
                   "  .amdhsa_system_sgpr_workgroup_id_x 1", ".end_amdhsa_kernel"]

    def setup(self):
        t, lane = vTm, vL
        o = ["s_cmp_ge_u32 s2, 256", "s_cbranch_scc1 L_end", "s_load_dwordx4 s[4:7], s[0:1], 0", "s_load_dwordx4 s[8:11], s[0:1], 16"]
        if self.stamps:
            o += [f"s_load_dwordx2 s[{sWS}:{sWS+1}], s[0:1], 40", "s_memtime s[56:57]", "s_memrealtime s[58:59]", f"s_mov_b32 s{sNst}, 1"]
        o += ["v_lshrrev_b32 v1, 6, v0", f"v_and_b32 v{lane}, 63, v0", f"v_readfirstlane_b32 s{sW}, v1",
              f"v_bfe_u32 v{t}, v{lane}, 2, 2", f"v_lshlrev_b32 v{vDMA}, 8, v{t}", f"v_lshrrev_b32 v{t}, 4, v{lane}",
              f"v_lshl_add_u32 v{vDMA}, v{t}, 6, v{vDMA}", f"v_and_b32 v{t}, 3, v{lane}", f"v_lshl_add_u32 v{vDMA}, v{t}, 4, v{vDMA}",
              f"s_mul_i32 s{sWStr}, s{sW}, {WSTR}", f"s_mul_i32 s{sT2}, s{sW}, 18432", f"v_lshl_add_u32 v{vOst}, v{lane}, 4, s{sT2}",
              f"s_mul_i32 s{sT0}, s2, 147456", f"s_lshl_b32 s{sT1}, s2, 18", f"s_mov_b32 s{sH}, 0", f"s_mov_b32 s{sBig}, 0x40000000",
              "s_mov_b64 vcc, 0"] + self.warm(0) + ["s_waitcnt lgkmcnt(0)"]
        for d, b, off, n in ((SRD_K, 6, sT1, 262144), (SRD_Q, 4, sT0, 147456), (SRD_V, 8, sT1, 262144 + 10240), (SRD_O, 10, sT0, 147456)):
            o += [f"s_add_u32 s{d}, s{b}, s{off}", f"s_addc_u32 s{d+1}, s{b+1}, 0"]
            if d == SRD_V:
                o += [f"s_sub_u32 s{d}, s{d}, 10240", f"s_subb_u32 s{d+1}, s{d+1}, 0"]
            o += [f"s_mov_b32 s{d+2}, {n}", f"s_mov_b32 s{d+3}, 0x20000"]
        if self.stamps:
            o += [f"v_writelane_b32 v{vSt0}, s56, 0", f"v_writelane_b32 v{vSt0+1}, s58, 0"]
        return o

    def consts(self):
        t, lane, r, g, x = vTm, vL, vTm + 1, vTm + 2, vTm + 3
        c = hex(f2u(128 ** -0.5 * 1.4426950408889634))
        o = [f"v_bfe_u32 v{lane}, v{vOst}, 4, 6", f"s_mov_b32 s{sC}, {c}", f"s_mov_b32 s{sC+1}, {c}",
             f"s_mov_b32 s{sLim}, {hex(f2u(2.0 ** self.lim))}", f"s_mov_b32 s{sMask}, 0xffff0000",
             f"s_mul_i32 s{sWbase}, s{sW}, {WREG}", f"s_add_u32 s{sWbase}, s{sWbase}, {W0}", f"s_sub_u32 s{sDum}, {DUMMY}, s{sWbase}",
             f"v_and_b32 v{r}, 15, v{lane}", f"v_lshrrev_b32 v{g}, 4, v{lane}", f"v_lshlrev_b32 v{vK0}, 4, v{g}",
             f"v_and_b32 v{t}, 3, v{r}", f"v_lshl_add_u32 v{x}, v{t}, 6, v{vK0}",
             f"v_lshlrev_b32 v{vVb}, 3, v{t}", f"v_lshrrev_b32 v{t}, 2, v{r}", f"v_lshl_add_u32 v{vVb}, v{t}, 6, v{vVb}",
             f"v_mul_u32_u24 v{vKb}, {WSTR}, v{t}", f"v_add_u32 v{vKb}, v{vKb}, v{x}",
             f"v_mul_u32_u24 v{t}, {WSTR}, v{g}", f"v_add_u32 v{vVb}, v{vVb}, v{t}",
             f"v_bfe_u32 v{t}, v{r}, 2, 1", f"v_lshl_add_u32 v{x}, v{t}, 10, v{x}", f"v_lshrrev_b32 v{t}, 3, v{r}",
             f"v_mul_u32_u24 v{t}, {GRP}, v{t}", f"v_add_u32 v{x}, v{x}, v{t}",
             f"s_and_b32 s{sT0}, s{sW}, 1", f"s_mul_i32 s{sT0}, s{sT0}, {GRP}", f"s_add_u32 s{sT0}, s{sT0}, s{sWbase}",
             f"s_lshr_b32 s{sT1}, s{sW}, 1", f"s_mul_i32 s{sT2}, s{sT1}, {2*WREG}", f"s_add_u32 s{sT2}, s{sT2}, {W0+8*GRP}",
             f"v_add_u32 v{vQa}, s{sT0}, v{x}", f"v_add_u32 v{vQc}, s{sT2}, v{x}",
             f"v_mul_u32_u24 v{x}, 272, v{r}", f"v_lshl_add_u32 v{x}, v{g}, 3, v{x}",
             f"v_add_u32 v{vStA}, s{sT0}, v{x}", f"v_add_u32 v{vStC}, s{sT2}, v{x}",
             f"v_mul_u32_u24 v{x}, 272, v{g}", f"v_lshl_add_u32 v{x}, v{r}, 4, v{x}", f"v_add_u32 v{x}, s{sWbase}, v{x}",
             f"v_accvgpr_write_b32 a{aStR}, v{x}", f"v_lshl_add_u32 v{vAuxB}, v{lane}, 4, s{sWbase}", f"v_mov_b32 v{vAux}, v{vAuxB}",
             f"s_mul_i32 s{sT0}, s{sT1}, {2*WSTR}", f"v_lshl_add_u32 v{vXc}, v{lane}, 4, s{sT0}",
             f"s_lshl_b32 s{sT0}, s{sT1}, 7", f"s_add_u32 s{sT0}, s{sT0}, {LX}", f"v_lshl_add_u32 v{vLx}, v{r}, 2, s{sT0}",
             f"v_mov_b32 v{vChk}, 0", f"v_add_u32 v{vK}, {4*STAGE}, v{vKb}", f"v_mov_b32 v{vV}, v{vVb}",
             f"v_and_b32 v{t}, 3, v{lane}", f"v_cmp_eq_u32 s[{sF}:{sF+1}], 0, v{t}", f"v_mov_b32 v{x}, 0x3f803f80", "s_nop 1",
             f"v_cndmask_b32 v{x}, 0, v{x}, s[{sF}:{sF+1}]"]
        o += [f"v_accvgpr_write_b32 a{aOne+i}, v{x}" for i in range(4)]
        o += [f"v_mov_b64 {vr(168+2*i,2)}, 0" for i in range(28)]
        o += [f"v_mov_b64 {vr(vP['b0']+2*i,2)}, 0" for i in range(4)]
        o += [f"v_accvgpr_write_b32 a{i}, 0" for i in list(range(aO, aO + 32)) + list(range(aV, aV + 52))]
        o += [f"s_mov_b32 s{sRd}, 0", f"s_mov_b32 s{sT}, 14", f"s_mov_b32 s{sQm0}, s{sWbase}",
              f"s_mul_i32 s{sQoff}, s{sW}, 18432", f"s_add_u32 s{sQoff}, s{sQoff}, 73728", f"s_mov_b32 s{sRel}, {(-6*GRP) & 0xffffffff}"]
        return o

    def mark(self):
        if self.stamps < 2:
            return []
        return ["s_memtime s[56:57]", "s_memrealtime s[58:59]", f"s_mov_b32 s{sM0s}, m0", f"s_mov_b32 m0, s{sNst}", f"s_add_u32 s{sNst}, s{sNst}, 1",
                "s_waitcnt lgkmcnt(0)", f"v_writelane_b32 v{vSt0}, s56, m0", f"v_writelane_b32 v{vSt0+1}, s58, m0", f"s_mov_b32 m0, s{sM0s}", "s_nop 0"]

    def start(self):
        up = self.opt.get("up", 14)
        qd = [96 + 4 * j for j in range(18)]
        wA, wC, sA, sCc = vR + 2, vR + 3, 60, 61
        o = ["L_start:"] + self.mark() + [f"s_lshl_b32 s{sOff}, s{sW}, 11", f"s_add_u32 m0, s{sWStr}, {4*STAGE}",
             f"s_mul_i32 s{sT0}, s{sH}, 73728", f"s_mul_i32 s{sT1}, s{sW}, 18432"] + self.stage()[:2]
        o += [f"s_add_u32 s{sT0}, s{sT0}, s{sT1}", f"s_add_u32 s{sOff}, s{sOff}, 8192", f"s_and_b32 s{sT1}, s{sW}, 1",
              f"s_lshl_b32 s{sA}, s{sT1}, 11", f"s_add_u32 s{sA}, s{sA}, s{sT0}", f"s_xor_b32 s{sT1}, s{sT1}, 1",
              f"s_lshl_b32 s{sCc}, s{sT1}, 14", f"s_add_u32 s{sCc}, s{sCc}, s{sT0}"]
        todo = []
        for j in range(18):
            k, sr = (j, sCc) if j < 2 else (j - 2, sA)
            of = f" offset:{(k%4)*1024}" if k % 4 else ""
            todo.append([f"buffer_load_dwordx4 {vr(qd[j],4)}, v{vDMA}, s[{SRD_Q}:{SRD_Q+3}], s{sr} offen{of} {self.ld}"] +
                        ([f"s_add_u32 s{sA}, s{sA}, 4096"] if k % 4 == 3 else []))
        for g in range(4):
            st = self.stage()
            todo += [[f"s_add_u32 m0, s{sWStr}, {g*STAGE}", st[0]], [st[1]], [st[2]],
                     [st[3], f"s_add_u32 s{sOff}, s{sOff}, 8192", self.dummy(0), self.dummy(1)]]
        n = 2

        def issue(k):
            nonlocal n
            r = [t for it in todo[:k] for t in it]
            del todo[:k]
            n += sum(t.startswith("buffer") for t in r)
            return r

        o += issue(up) + self.mark() + self.consts()
        o += [f"s_and_b32 s{sT0}, s{sW}, 1", f"s_mul_i32 s{sT1}, s{sT0}, {GRP}", f"v_add_u32 v{wA}, s{sT1}, v{vAuxB}",
              f"s_mul_i32 s{sT1}, s{sT0}, {8*GRP}", f"v_subrev_u32 v{wC}, s{sT1}, v{vAuxB}", f"v_add_u32 v{vL}, {4*STAGE}, v{vK0}"]
        o += self.mark() + self.warm(1) + self.mark()
        lg0 = "s_waitcnt lgkmcnt(0)"
        for j in range(18):
            o.append(f"s_waitcnt vmcnt({n-3-j})")
            o += self.mark() if j in (0, 8, 17) else []
            o += issue(1)
            for i in range(4):
                o += scale(qd[j] + i, i, True)
            x = {4: "c", 7: "a0", 11: "a1", 15: "b0"}
            if j in x:
                o += [lg0] + mchain(x[j])
            if j - 1 in x:
                o += negate(x[j - 1])
            if j == 9:
                o += [qk("a0", f) for f in range(8)]
            k = j - 2
            o.append(f"ds_write_b128 v{wC}, {vr(qd[j],4)} offset:{8*GRP+j*1024}" if j < 2 else
                     f"ds_write_b128 v{wA}, {vr(qd[j],4)} offset:{(k>>1)*GRP+(k&1)*1024}")
            if j == 1:
                o += [lg0, "s_barrier"] + [f"ds_read_b128 {ar(aK0+4*ks,4)}, v{vL} offset:{ks*256}" for ks in range(4)]
                o += [qread("c", ks) for ks in range(4)] + [kread(f) for f in range(8)]
            elif j % 4 == 1:
                o += [qread(XS[j // 4 - 1], ks) for ks in range(4)]
            if j:
                o += [f"v_mov_b64 {vr(qd[j-1]+2*i,2)}, 0" for i in range(2)]
        o += self.mark() + issue(99) + [f"s_add_u32 m0, s{sWStr}, {4*STAGE}"] + [f"v_mov_b64 {vr(qd[17]+2*i,2)}, 0" for i in range(2)]
        o += ["s_cbranch_vccnz L_prepass", lg0] + mchain("b1") + negate("b1")
        o += ["L_fix0r:", f"v_mov_b32 v{vK}, v{vKb}", f"s_bitcmp1_b32 s{sW}, 0", "s_cbranch_scc1 L_A85", "s_branch L_A0"]
        self.fix += ["L_prepass_ret:"] + [kread(f) for f in range(8)]
        self.fix += [f"v_accvgpr_read_b32 v{vM[x]+i}, a{aSave+n}" for n, x in enumerate(XS) for i in range(4)]
        self.fix += [lg0] + [qk("a0", f) for f in range(8)] + ["s_nop 7", "s_branch L_fix0r"]
        return o

    def warm(self, ph):
        if not self.opt.get("warm", 3) & (1 << ph):
            return ["L_w" + "ab"[ph] + ":"]
        if ph:
            return [t for w in range(4) for t in (f"s_cmp_eq_u32 s{sW}, {w}", f"s_cbranch_scc1 L_pb{w}")] + ["L_wb:"]
        o = ["s_lshr_b32 s60, s2, 1", "s_and_b32 s60, s60, 12", f"s_add_u32 s60, s60, s{sW}"]
        return o + [t for k in range(self.npg) for t in (f"s_cmp_eq_u32 s60, {k}", f"s_cbranch_scc1 L_pa{k}")] + ["L_wa:"]

    def prepass(self):
        a, m = vR, vD
        o = ["L_prepass:", f"v_bfe_u32 v{a}, v{vOst}, 4, 4", f"v_lshl_add_u32 v{a}, v{a}, 8, v{vK0}", f"v_add_u32 v{a+1}, 4096, v{a}"]
        o += [f"v_mov_b32 v{m+n}, 0xff800000" for n in range(5)]
        o += [f"s_lshl_b32 s{sT0}, s{sH}, 17", f"s_mov_b32 s{sT1}, 16", "L_prepass_loop:"]
        o += [f"buffer_load_dwordx4 {ar(aK+4*f,4)}, v{a+(f>>2)}, s[{SRD_K}:{SRD_K+3}], s{sT0} offen offset:{(f&3)*64}" for f in range(8)]
        o.append("s_waitcnt vmcnt(0) lgkmcnt(0)")
        o += [qk(x, f, True) for x in XS for f in range(8)]
        o += [f"v_max3_f32 v{m+n}, v{m+n}, v{vS[x]+2*i}, v{vS[x]+2*i+1}" for n, x in enumerate(XS) for i in range(4)]
        o += [f"s_add_u32 s{sT0}, s{sT0}, 8192", f"s_sub_u32 s{sT1}, s{sT1}, 1", f"s_cmp_lg_u32 s{sT1}, 0", "s_cbranch_scc1 L_prepass_loop"]
        for n in range(5):
            for sw in ("v_permlane16_swap_b32", "v_permlane32_swap_b32"):
                o += [f"v_mov_b32 v{a}, v{m+n}", f"{sw} v{m+n}, v{a}", f"v_max_f32 v{m+n}, v{m+n}, v{a}"]
            o += [f"v_sub_f32 v{m+n}, 0, v{m+n}", f"v_accvgpr_read_b32 v{a}, a{aSave+n}", f"v_accvgpr_write_b32 a{aSave+5+n}, v{a}",
                  f"v_accvgpr_write_b32 a{aSave+n}, v{m+n}"]
        o += [f"s_cmp_eq_u32 s{sH}, 0", "s_cbranch_scc1 L_prepass_ret", f"s_mov_b32 s{sH}, 0", "s_barrier", "s_branch L_start"]
        return o

    def fin(self, par):
        o = ["s_nop 0", f"v_readfirstlane_b32 s{sT2}, v{vD}", f"s_cbranch_vccnz L_done{par}", f"s_cmp_lg_u32 s{sT2}, 0"]
        if not self.opt.get("noredo"):
            o.append("s_cbranch_scc1 L_redo")
        o.append(f"L_done{par}:")
        if self.stamps:
            o += ["s_waitcnt vmcnt(0)", "s_memtime s[56:57]", "s_memrealtime s[58:59]", f"s_mov_b32 m0, s{sNst}", "s_waitcnt lgkmcnt(0)",
                  f"v_writelane_b32 v{vSt0}, s56, m0", f"v_writelane_b32 v{vSt0+1}, s58, m0",
                  f"s_mov_b32 s{sWS+2}, 0x100000", f"s_mov_b32 s{sWS+3}, 0x20000", f"s_lshl_b32 s{sT0}, s2, 2", f"s_add_u32 s{sT0}, s{sT0}, s{sW}",
                  f"s_lshl_b32 s{sT0}, s{sT0}, 9", f"v_bfe_u32 v{vTm}, v{vOst}, 4, 6", f"v_lshlrev_b32 v{vTm}, 2, v{vTm}",
                  f"buffer_store_dword v{vSt0}, v{vTm}, s[{sWS}:{sWS+3}], s{sT0} offen",
                  f"buffer_store_dword v{vSt0+1}, v{vTm}, s[{sWS}:{sWS+3}], s{sT0} offen offset:256"]
        return o + ["s_endpgm"]

    def redo(self):
        return ["L_end:", "s_endpgm", "L_redo:", "s_mov_b64 vcc, -1", f"s_mov_b32 s{sH}, 1", "s_waitcnt vmcnt(0) lgkmcnt(0)", "s_barrier", "s_branch L_start"]

    def layout(self, segs):
        out, npg = [], 0
        for ops in segs:
            pos, first = (0, True) if out else (96, False)
            for t in ops:
                sz = isize(t)
                if first or (pos + sz > 4096 - 4 and not t.endswith(":")):
                    if not first:
                        out.append(f"s_branch L_pg{npg}")
                    out += [".p2align 12", f"L_pa{npg}:", "s_branch L_wa", f"L_pb{npg}:", f"s_branch @{npg}", f"L_pg{npg}:"]
                    npg, pos, first = npg + 1, 8, False
                out.append(t)
                pos += sz
        assert self.npg == npg
        return [(f"s_branch L_pb{int(t[10:])+4}" if int(t[10:]) + 4 < npg else "s_branch L_wb") if t.startswith("s_branch @") else t for t in out]

    def build(self):
        A, B = self.period(2, "A"), self.period(20, "B")
        T = [self.trans(0), self.trans(1)]
        E = [self.tail(0), self.tail(1)]
        A[0].lab, A[85].lab = ["L_A0:"], ["L_A85:"]
        B[0].lab, B[77].lab, B[111].lab = ["L_B0:"], ["L_B77:"], ["L_B111:"]
        T[0][0].lab, E[0][0].lab = ["L_Ax:"], ["L_Bx:"]
        vq = []
        for g in range(4):
            vq += [(Op(o), g) for o in self.stage()] + [(Op("s_nop 0"), None)] * 2
        tr = [A * 7 + A[:85] + T[0] + B[111:] + B * 6 + B[:85] + E[0], A[85:] + A * 7 + T[1] + B[77:] + B * 6 + E[1]]
        insert_waits([(t, vq) for t in tr])
        seg = {}
        for n, G in (("A", A), ("B", B), ("T0", T[0]), ("T1", T[1]), ("E0", E[0]), ("E1", E[1])):
            ops = [o for g in G for o in g.ops()]
            seg[n] = check_hazards(ops, n, True)
            print(n, "gaps", len(G), "ops", len(ops), "nops", len(seg[n]) - len(ops), "est", int(sum(gcost(g) + (16.3 if g.mfma else 0) + (9 if g.bar else 0) for g in G)),
                  "vm", [g.vm for g in G if g.vm is not None], file=sys.stderr)
        lab = lambda s, l: [o.t for o in seg[s]].index(l)
        for a, b in ((seg["A"], seg["A"]), (seg["A"][:lab("A", "L_A85:")], seg["T0"]), (seg["A"], seg["T1"]), (seg["T0"], seg["B"][lab("B", "L_B111:"):]),
                     (seg["T1"], seg["B"][lab("B", "L_B77:"):]), (seg["B"], seg["B"]), (seg["B"], seg["E1"]),
                     (seg["B"][:[o.t for o in seg["B"]].index("s_cbranch_scc1 L_Bx") + 1], seg["E0"])):
            assert check_hazards(a[-14:] + b[:14], "seam") == 0
        fx = lambda l: [o.t for o in check_hazards([Op(t) for t in l], "s", True)]
        tx = {n: [o.t for o in seg[n]] for n in seg}
        self.npg = 9
        head = fx(self.setup() + self.start())
        head += self.redo() + self.fix + fx(self.prepass())
        body = self.layout([head, tx["A"] + ["s_branch L_T1"], ["L_T1:"] + tx["T1"], tx["T0"], tx["B"] + ["s_branch L_E1"], ["L_E1:"] + tx["E1"], tx["E0"]])
        self.header()
        self.many(body)
        self.footer()
        return "\n".join(self.L) + "\n"


if __name__ == "__main__":
    out = sys.argv[1]
    kw = {}
    for a in sys.argv[2:]:
        k, v = a.split("=")
        kw[k] = int(v) if v.lstrip("-").isdigit() else v.replace("_", " ")
    open(out, "w").write(Gen(**kw).build())
```

```python
import struct
import sys
from sched import Op, Gap, place, chain, gcost, insert_waits, check_hazards

NAME = "standalone__mha_softmax__near_ridge"

WSTR = 4128
STAGE = 4 * WSTR
RING = 5 * STAGE
GRP = 2176
W0 = RING
WREG = 9 * GRP
DUMMY = W0 + 4 * WREG
LX = DUMMY + 2048
FLAG = LX + 256
LDS_BYTES = FLAG + 64
assert LDS_BYTES <= 163840

sW = 3
SRD_Q, SRD_K, SRD_V, SRD_O = 12, 16, 20, 24
sC = 28
sRd, sOff, sWStr, sT, sH, sBig = 30, 31, 32, 33, 34, 35
sQm0, sQoff, sRel, sDum, sWbase = 36, 37, 38, 39, 40
sT0, sT1, sT2, sLim, sMask, sM0s, sNst = 41, 42, 43, 44, 45, 46, 47
sF = 48
sWS = 52

vOst, vDMA, vKb, vVb, vK, vV, vQa, vQc, vStA, vStC, vAux, vAuxB, vXc, vLx, vChk, vK0 = range(16)
XS = ["a0", "a1", "b0", "b1", "c"]
vS = {x: 16 + 8 * i for i, x in enumerate(XS)}
vP = {x: 56 + 4 * i for i, x in enumerate(XS)}
vM = {x: 76 + 4 * i for i, x in enumerate(XS)}
vO = {x: 96 + 32 * i for i, x in enumerate(XS[:4])}
vR, vTm, vL, vDead, vSt0, vD = 224, 228, 232, 236, 238, 240
aO = 0
aQ = {x: 32 + 16 * i for i, x in enumerate(XS)}
aK, aV = 112, 144
aL = {x: 176 + 4 * i for i, x in enumerate(XS)}
aOne, aK0, aSave, aStR = 196, 200, 216, 226
MF = "v_mfma_f32_16x16x32_bf16"
SEQ = [("qk", "a1", 0), ("pv", "b", -1), ("qk", "c", 0), ("qk", "b0", 0), ("pv", "a", 0), ("qk", "b1", 0), ("pv", "c", 0),
       ("qk", "a0", 1), ("qk", "a1", 1), ("pv", "b", 0), ("qk", "b0", 1), ("qk", "b1", 1), ("pv", "a", 1), ("qk", "a0", 2)]
UNITS = [("a0", 0), ("a1", 0), ("c", 0), ("b0", 0), ("b1", 0), ("a0", 1), ("a1", 1), ("b0", 1), ("b1", 1)]


def f2u(x):
    return struct.unpack("<I", struct.pack("<f", x))[0]


def vr(b, n=1):
    return f"v{b}" if n == 1 else f"v[{b}:{b+n-1}]"


def ar(b, n=1):
    return f"a{b}" if n == 1 else f"a[{b}:{b+n-1}]"


def qk(x, f, zero=False):
    kt, ks = f >> 2, f & 3
    d = vr(vS[x] + 4 * kt, 4)
    c = d if ks else ("0" if zero else vr(vM[x], 4))
    return f"{MF} {d}, {ar(aK+4*f,4)}, {ar(aQ[x]+4*ks,4)}, {c}"


def pvgroup(X, first):
    xs = [X + "0", X + "1"] if X in "ab" else [X]
    r = [f"{MF} {ar(aL[x],4)}, {ar(aOne,4)}, {vr(vP[x],4)}, {'0' if first else ar(aL[x],4)}" for x in xs]
    for dt in range(8):
        for x in (xs if dt % 2 == 0 else xs[::-1]):
            o = ar(aO + 4 * dt, 4) if x == "c" else vr(vO[x] + 4 * dt, 4)
            r.append(f"{MF} {o}, {ar(aV+4*dt,4)}, {vr(vP[x],4)}, {'0' if first else o}")
    return r


def mchain(x):
    d = vr(vM[x], 4)
    return [f"{MF} {d}, {ar(aK0+4*ks,4)}, {ar(aQ[x]+4*ks,4)}, {d if ks else '0'}" for ks in range(4)]


def negate(x):
    return [f"v_sub_f32 v{vM[x]+i}, 0, v{vM[x]+i}" for i in range(4)]


def kread(f):
    return f"ds_read_b128 {ar(aK+4*f,4)}, v{vK} offset:{(f>>2)*1024+(f&3)*256}"


def vread(dt, s):
    return f"ds_read_b64_tr_b16 {ar(aV+4*dt+2*s,2)}, v{vV} offset:{2048+s*1024+(dt>>1)*256+(dt&1)*32}"


def qread(x, ks):
    a, b = (vQc, 0) if x == "c" else (vQa, XS.index(x) * 2 * GRP)
    return f"ds_read_b128 {ar(aQ[x]+4*ks,4)}, v{a} offset:{b+ks*256}"


def scale(d, n, pk=False):
    t = vTm + 2 * (n & 1)
    mul = [f"v_pk_mul_f32 {vr(t,2)}, {vr(t,2)}, s[{sC}:{sC+1}]"] if pk else [f"v_mul_f32 v{t+i}, s{sC}, v{t+i}" for i in range(2)]
    return [f"v_lshlrev_b32 v{t}, 16, v{d}", f"v_and_b32 v{t+1}, s{sMask}, v{d}"] + mul + [f"v_cvt_pk_bf16_f32 v{d}, v{t}, v{t+1}"]


def isize(op):
    if op.endswith(":"):
        return 0
    m = op.split()[0]
    if m.startswith(("v_mfma", "ds_", "buffer_", "v_cvt_pk", "v_pk_", "v_accvgpr", "v_lshl_add", "s_mem", "v_or3", "v_add3", "v_bfe", "v_writelane", "v_cmp")):
        return 8
    if m.startswith(("s_waitcnt", "s_barrier", "s_cbranch", "s_branch", "s_nop")):
        return 4
    for a in op[len(m):].split(","):
        try:
            if not -16 <= int(a.strip(), 0) <= 64:
                return 8
        except ValueError:
            pass
    return 4


def idx(G, *key):
    return [g.id for g in G].index(key)


class Gen:
    def __init__(self, ld="nt", st="sc0 sc1", stamps=0, lim=40, st0=22, **opt):
        self.L, self.ld, self.st, self.stamps, self.lim, self.st0, self.opt = [], ld, st, stamps, lim, st0, opt
        self.fix = []

    def e(self, s):
        self.L.append(s if s.endswith(":") else "    " + s)

    def many(self, lst):
        for s in lst:
            self.e(s)

    def dma(self, srd, soff, off):
        o = f" offset:{off}" if off else ""
        return f"buffer_load_dwordx4 v{vDMA}, s[{srd}:{srd+3}], s{soff} offen{o} {self.opt.get('ld' + 'qkv'[(srd - SRD_Q) >> 2], self.ld)} lds"

    def stage(self):
        return [self.dma(SRD_K, sOff, 0), self.dma(SRD_K, sOff, 1024), self.dma(SRD_V, sOff, 2048), self.dma(SRD_V, sOff, 3072)]

    def dummy(self, i):
        return f"buffer_load_dword v{vDead+i}, v{vOst}, s[{SRD_Q}:{SRD_Q+3}], s{sBig} offen"

    def store(self, d, soff, off):
        o = f" offset:{off}" if off else ""
        return f"buffer_store_dwordx4 {vr(d,4)}, v{vOst}, s[{SRD_O}:{SRD_O+3}], s{soff} offen{o} {self.st}"

    def barrier(self, g, kind):
        g.bar = kind
        if self.stamps:
            g.lg = 0
            g.pre = [Op("s_memtime s[56:57]"), Op("s_memrealtime s[58:59]")]
            g.aft = [Op(t) for t in (f"s_mov_b32 s{sM0s}, m0", f"s_mov_b32 m0, s{sNst}", f"s_add_u32 s{sNst}, s{sNst}, 1", "s_nop 3",
                                     f"v_writelane_b32 v{vSt0}, s56, m0", f"v_writelane_b32 v{vSt0+1}, s58, m0", f"s_mov_b32 m0, s{sM0s}", "s_nop 0")]

    def period(self, t0, flav):
        G = []
        for kind, x, d in SEQ:
            t = t0 + d
            ms = [qk(x, f) for f in range(8)] if kind == "qk" else pvgroup(x, flav == "T" and (t == 16 or (x == "c" and t == 17)))
            for i, m in enumerate(ms):
                G.append(Gap(m if t < 32 else None))
                G[-1].id = (kind, x, t, i)
        assert len(G) == 153
        for k, (x, d) in enumerate(UNITS):
            if t0 + d < 32:
                for i in range(8):
                    G[17 * k + 2 * i].add(Op(f"v_exp_f32 v{vS[x]+i}, v{vS[x]+i}"))
                for j in range(4):
                    G[17 * k + 4 * j + 3].add(Op(f"v_cvt_pk_bf16_f32 v{vP[x]+j}, v{vS[x]+2*j}, v{vS[x]+2*j+1}"))
        for h, (B, pv0, pa, k0, kn, ck) in enumerate(((9, 8, 42, 60, 77, 84), (86, 93, 127, 119, 145, 152))):
            t = t0 + h
            if t >= 32:
                continue
            self.barrier(G[B], "ring")
            G[B].id2 = ("bar", t)
            G[ck].full = flav in "AB" or (flav == "N" and h == 1)
            g = B
            if flav == "T" and t == 16:
                X = B + (13 if h == 0 else 12)
                par = t0 & 1
                self.xwrite(G, par, B + 1, X - 3)
                self.barrier(G[X], "x")
                g = self.xread(G, par, X + 1, X + 6) + 6
                G[g + 1].need = "ds"
                self.xpos = G[g + 1]
            if flav != "E":
                for o in self.stage():
                    g = place(G, o, g + 1, g + 6, tag="stage")
            if flav == "A":
                r0 = chain(G, [(f"s_add_u32 s{sRel}, s{sRel}, {GRP}", 1), (f"s_cmp_lt_u32 s{sRel}, {WREG}", 1),
                               (f"s_cselect_b32 s{sT1}, s{sRel}, s{sDum}", 1), (f"v_add_u32 v{vAux}, s{sT1}, v{vAuxB}", 0)] +
                           [(f"ds_read_b128 {vr(vD+4*p,4)}, v{vAux} offset:{1024*p}", 0) for p in range(2)], B + 1, B + 14)
                assert r0[2] <= g
            gv = 0
            for dt in range(8):
                for s in range(2):
                    gv = max(gv, place(G, vread(dt, s), max(B + 1, pv0 + 3 + 2 * dt), pa + 2 * dt - 4))
            if t + 1 >= 32:
                continue
            gk = 0
            for f in range(8):
                gk = max(gk, place(G, kread(f), k0 + f, kn + f - 7))
            ops = [(f"s_add_u32 s{sOff}, s{sOff}, 8192", 1)]
            adv = [(f"s_add_u32 m0, s{sRd}, s{sWStr}", 1), (f"s_add_u32 s{sRd}, s{sRd}, {STAGE}", 1),
                   (f"s_cmp_eq_u32 s{sRd}, {RING}", 1), (f"s_cselect_b32 s{sRd}, 0, s{sRd}", 1),
                   (f"v_add_u32 v{vV}, s{sRd}, v{vVb}", 0, gv), (f"v_add_u32 v{vK}, s{sRd}, v{vKb}", 0, gk)]
            side = None
            if flav == "A":
                ops += [(f"s_cmp_ge_u32 s{sT}, 6", 1), (f"s_cselect_b32 m0, s{sQm0}, {DUMMY}", 1),
                        (f"s_cselect_b32 s{sT0}, s{sQoff}, s{sBig}", 1),
                        (self.dma(SRD_Q, sT0, 0), 1), (self.dma(SRD_Q, sT0, 1024), 1),
                        (f"s_add_u32 s{sQm0}, s{sQm0}, {GRP}", 1), (f"s_add_u32 s{sQoff}, s{sQoff}, 2048", 1)]
                side = []
                for p in range(2):
                    for i in range(4):
                        side += [(o, 0) for o in scale(vD + 4 * p + i, i)]
                    side.append((f"ds_write_b128 v{vAux}, {vr(vD+4*p,4)} offset:{1024*p}", 0))
            elif flav == "N":
                ops += [(f"s_mov_b32 m0, s{sQm0}", 1), (self.dma(SRD_Q, sQoff, 0), 1), (self.dma(SRD_Q, sQoff, 1024), 1),
                        (f"s_add_u32 s{sQm0}, s{sQm0}, {GRP}", 1), (f"s_add_u32 s{sQoff}, s{sQoff}, 2048", 1), (f"s_sub_u32 s{sT}, s{sT}, 1", 1)]
            elif flav == "B":
                ops += [(f"v_add_u32 v{vAux}, {GRP}, v{vAux}", 0)]
                ops += [(f"ds_read_b128 {vr(vD+4*p,4)}, v{vAux} offset:{1088*p}", 0, 0, 999, "priv") for p in range(2)]
                ops += [(f"s_add_u32 s{sRel}, s{sRel}, 2048", 1), (f"s_cmp_lt_u32 s{sRel}, 18432", 1),
                        (f"s_cselect_b32 s{sT0}, s{sRel}, s{sBig}", 1),
                        (self.store(vD, sT0, 0), 5), (self.store(vD + 4, sT0, 1024), 1)]
            elif flav == "T":
                ops += [(self.dummy(0), 1), (self.dummy(1), 1)]
            if flav == "E":
                ops = []
            chain(G, ops + adv, g + 1, ck - 2)
            if side and not self.opt.get("noscale"):
                chain(G, side, r0[-1] + 7, ck - self.opt.get('sidehi', 5))
            if flav in "AB":
                place(G, f"s_sub_u32 s{sT}, s{sT}, 1", ck - 1, ck - 1)
                G[ck].sc.append(Op(f"s_cbranch_scc1 L_{flav}x" if h == 0 else f"s_cbranch_scc0 L_{flav}0"))
            if flav == "N" and h == 1:
                place(G, f"s_cmp_ge_u32 s{sT}, 10", ck - 1, ck - 1)
                G[ck].sc.append(Op("s_cbranch_scc1 L_N0"))
        return G

    def xwrite(self, G, par, lo, hi):
        o = [(f"ds_write_b128 v{vXc}, {ar(aO+16*(1-par)+4*j,4)} offset:{(1-par)*WSTR+1024*j}", 0) for j in range(4)]
        o.append((f"ds_write_b32 v{vLx}, {ar(aL['c'])} offset:{(1-par)*64}", 0))
        return chain(G, o, lo, hi)[-1]

    def xread(self, G, par, lo, hi):
        o = [(f"ds_read_b128 {vr(vD+4*j,4)}, v{vXc} offset:{par*WSTR+1024*j}", 0, 0, 999, "x") for j in range(4)]
        o.append((f"ds_read_b32 v{vL}, v{vLx} offset:{par*64}", 0, 0, 999, "x"))
        return chain(G, o, lo, hi)[-1]

    def norm_c(self, par, pk=False):
        r = vL + 2
        o = [f"v_accvgpr_read_b32 v{vL+1}, {ar(aL['c'])}", f"v_add_f32 v{vL}, v{vL}, v{vL+1}", f"v_rcp_f32 v{r}, v{vL}",
             f"v_add_f32 v{vChk}, v{vChk}, v{vL}"]
        for j in range(4):
            d = vD + 4 * j
            o += [f"v_accvgpr_read_b32 v{vTm+i}, {ar(aO+16*par+4*j+i)}" for i in range(4)]
            if pk:
                o += [f"v_pk_add_f32 {vr(d+i,2)}, {vr(d+i,2)}, {vr(vTm+i,2)}" for i in (0, 2)] + self.pkmul(d, r)
            else:
                o += [f"v_add_f32 v{d+i}, v{d+i}, v{vTm+i}" for i in range(4)] + [f"v_mul_f32 v{d+i}, v{d+i}, v{r}" for i in range(4)]
            o += self.pack(d, vStC, (4 * par + j) * 32)
        return [(t, 0) for t in o]

    def pkmul(self, d, r):
        return [f"v_pk_mul_f32 {vr(d+i,2)}, {vr(d+i,2)}, {vr(r,2)} op_sel_hi:[1,0]" for i in (0, 2)]

    def pack(self, d, addr, off):
        return [f"v_cvt_pk_bf16_f32 v{d}, v{d}, v{d+1}", f"v_cvt_pk_bf16_f32 v{d+1}, v{d+2}, v{d+3}", f"ds_write_b64 v{addr}, {vr(d,2)} offset:{off}"]

    def norm(self, G, X, t, tn, lo, hi, nb=1):
        p = idx(G, "pv", X, t, 0)
        n = idx(G, "pv", X, tn, 0) if tn else 9999
        o = [(f"v_accvgpr_read_b32 v{vR+2*q+1}, {ar(aL[X+str(q)])}", 0) for q in range(2)]
        for q in range(2):
            o += [(f"v_rcp_f32 v{vR+2*q}, v{vR+2*q+1}", 0), (f"v_add_f32 v{vChk}, v{vChk}, v{vR+2*q+1}", 0)]
        g = chain(G, o, max(lo, p + 6), max(lo, p + 6) + 10)[-1]
        o = []
        per = 8 // nb
        for k in range(nb):
            dts = range(per * k, per * k + per)
            g = max(g + 1, p + 3 + 2 * dts[-1])
            while G[g].valu or G[g].bar:
                g += 1
            for dt in dts:
                for q in range(2):
                    x = X + str(q)
                    for s in self.pkmul(vO[x] + 4 * dt, vR + 2 * q):
                        G[g].add(Op(s))
                    o += [(s, 0, g, n + 2 * dt) for s in self.pack(vO[x] + 4 * dt, vStA, XS.index(x) * 2 * GRP + dt * 32)]
        return g, o

    def trans(self, par):
        if par == 0:
            G = self.period(14, "T")[85:] + self.period(16, "T")
            ins = {"a0": ("pv", "a", 15), "a1": ("qk", "a0", 16), "c": ("qk", "a1", 16), "b0": ("pv", "b", 15), "b1": ("qk", "c", 16)}
        else:
            G = self.period(15, "T") + self.period(17, "T")
            ins = {"a0": ("qk", "b1", 15), "a1": ("pv", "c", 15), "c": ("qk", "a0", 16), "b0": ("qk", "a1", 16), "b1": ("pv", "b", 15)}
        for x, key in ins.items():
            i = idx(G, *key, 0)
            new = [Gap(m) for m in mchain(x)]
            for n, g in enumerate(new):
                g.id = ("m", x, 16, n)
            G[i:i] = new
        b15 = [getattr(g, "id2", None) for g in G].index(("bar", 15))
        b16 = [getattr(g, "id2", None) for g in G].index(("bar", 16))
        m0 = idx(G, "m", "a0", 16, 0)
        chain(G, [(f"ds_read_b128 {ar(aK0+4*ks,4)}, v{vK0} offset:{ks*256}", 0) for ks in range(4)], b15 + 1, m0 - 8)
        for x in ins:
            last = 15 if (x != "c" or par) else 14
            lo = idx(G, "qk", x, last, 7) if ("qk", x, last, 7) in [g.id for g in G] else 0
            m = idx(G, "m", x, 16, 0)
            free = b16 - 1 if x == "c" else idx(G, "pv", x[0], 15, 0) + 16
            chain(G, [(qread(x, ks), 0) for ks in range(4)], lo, min(m - 8, free))
            nq = idx(G, "qk", x, 17 if (x == "c" and par) else 16, 0)
            lab = f"L_fix{par}{x}"
            r = chain(G, [(o, 0) for o in negate(x)], m + 8, nq - 2)
            G[r[-1]].post += [Op(f"s_cbranch_vccnz {lab}"), Op(f"{lab}r:")]
            self.fix += [f"{lab}:"] + [f"v_accvgpr_read_b32 v{vM[x]+i}, a{aSave+5+XS.index(x)}" for i in range(4)] + ["s_nop 1", f"s_branch {lab}r"]
        ga, oa = self.norm(G, "a", 15, 16, 0, 0)
        gb, ob = self.norm(G, "b", 15, 16, ga, 0)
        xp = G.index(self.xpos)
        todo = [(oa, ga, len(G)), (self.norm_c(par), xp, idx(G, "pv", "c", 16 + par, 0) - 1), (ob, gb, len(G))]
        for k in ((0, 1, 2), (0, 2, 1))[par]:
            chain(G, *todo[k])
        k = self.st0 - 17 - par
        assert k >= 1
        chain(G, [(f"v_accvgpr_read_b32 v{vAux}, a{aStR}", 0), (f"v_subrev_u32 v{vAux}, {k*GRP}, v{vAux}", 0),
                  (f"s_mov_b32 s{sRel}, {(-k*2048) & 0xffffffff}", 0), (f"s_mov_b32 s{sT}, {12-par}", 1)], 2, 60)
        G[-1].post.append(Op("s_branch L_B0"))
        txt = [o.t for g in G for o in g.ops()]
        for n, x in enumerate(XS[:4]):
            wr = [i for i, t in enumerate(txt) if t.startswith(f"ds_write_b64 v{vStA},") and int(t.split(":")[-1]) // (2 * GRP) == n]
            assert len(wr) == 8 and min(wr) > max(txt.index(qread(x, ks)) for ks in range(4)), x
        return G

    def tail(self, par):
        seq = [[("qk", "a1"), ("pv", "b"), ("qk", "b0"), ("qk", "b1")],
               [("qk", "c"), ("pv", "b"), ("qk", "a1"), ("qk", "b0"), ("pv", "c"), ("qk", "b1")]][par] + [("pv", x) for x in XS[:4]]
        G, at = [], {}
        for kind, x in seq:
            at[kind, x] = len(G)
            G += [Gap(m) for m in ([qk(x, f) for f in range(8)] if kind == "qk" else pvgroup(x, False))]
        at["qk", "a0"] = -8
        nm = len(G)
        G += [Gap() for _ in range(90)]
        B = 9 if par else 1
        self.barrier(G[B], "ring")
        X = B + 54
        self.barrier(G[X], "x")
        o = []
        for x in [["a0", "a1", "b0", "b1"], ["a0", "c", "a1", "b0", "b1"]][par]:
            q, hi = at["qk", x], at["pv", x] - 2
            for j in range(4):
                lo = q + 8 + 4 * (j >> 1)
                o += [(f"v_exp_f32 v{vS[x]+i}, v{vS[x]+i}", 0, lo, hi) for i in (2 * j, 2 * j + 1)]
                o += [(f"v_cvt_pk_bf16_f32 v{vP[x]+j}, v{vS[x]+2*j}, v{vS[x]+2*j+1}", 1, max(lo, 26 if x[0] == "b" else 0), hi)]
        chain(G, o, 0, nm, late=0.02)
        chain(G, [(vread(dt, s), 0, max(B + 1, 11 + 2 * dt), 36 + dt) for dt in range(8) for s in range(2)], B + 1, nm)
        self.xwrite(G, par, at["pv", "c"] + 12 if par else B + 1, X - 2)
        gx = self.xread(G, par, X + 1, X + 4)
        aC, gC = vS["c"], vS["c"] + 1
        t = vS["c"] + 2
        chain(G, [(s, 0) for s in (f"v_accvgpr_read_b32 v{vAux}, a{aStR}", f"s_lshr_b32 s{sT1}, s{sW}, 1", f"s_mul_i32 s{sT2}, s{sT1}, {2*WREG}",
                                   f"v_bfe_u32 v{t}, v{vOst}, 7, 3", f"v_and_b32 v{t+1}, 0x70, v{vOst}", f"v_mul_u32_u24 v{aC}, 272, v{t}",
                                   f"v_lshl_add_u32 v{gC}, v{t}, 8, v{t+1}", f"v_add3_u32 v{aC}, v{aC}, v{t+1}, s{sT2}",
                                   f"v_add_u32 v{aC}, {W0+8*GRP+128*par}, v{aC}", f"s_mul_i32 s{sT1}, s{sT1}, 36864",
                                   f"s_add_u32 s{sT1}, s{sT1}, {73728+16384+128*par}")], at["pv", "c"] if par else 2, at["pv", "a0"] + 8)

        def norm(x):
            p, r = at["pv", x], vR + 2 * (XS.index(x) & 1)
            o = [(f"v_accvgpr_read_b32 v{r+1}, {ar(aL[x])}", 0, p + 5), (f"v_rcp_f32 v{r}, v{r+1}", 0), (f"v_add_f32 v{vChk}, v{vChk}, v{r+1}", 0)]
            o += [(s, -1 if dt + i else 1, p + 8) for dt in range(8) for i, s in enumerate(self.pkmul(vO[x] + 4 * dt, r))]
            return o + [(s, 0) for dt in range(8) for s in self.pack(vO[x] + 4 * dt, vStA, XS.index(x) * 2 * GRP + dt * 32)]

        def rd(x):
            if x == "c":
                return [(f"ds_read_b128 {vr(vD+4*j,4)}, v{aC} offset:{j*GRP}", 0, 0, 999, "priv") for j in range(2)]
            return [(f"ds_read_b128 {vr(vO[x]+4*j,4)}, v{vAux} offset:{(2*par+4*XS.index(x)+j)*1088}", 0, 0, 999, "priv") for j in range(4)]

        def st(x):
            if x == "c":
                return [(self.store(vD + 4 * j, sT1, 2048 * j).replace(f"v{vOst},", f"v{gC},"), 1) for j in range(2)]
            return [(f"s_mov_b32 s{sT0}, {73728+(2*par+4*XS.index(x))*1024}", 0)] + [(self.store(vO[x] + 4 * j, sT0, j * 1024), 1 if j else 0) for j in range(4)]

        nc = self.norm_c(par, True)
        nc[0] = (nc[0][0], 0, gx + 5)
        flag = [(s, 0) for s in (f"v_cmp_ngt_f32 s[{sF}:{sF+1}], s{sLim}, v{vChk}", f"s_lshl_b32 s{sT2}, s{sW}, 2", f"v_mov_b32 v{vTm+2}, {FLAG}",
                                 f"v_add_u32 v{vTm}, s{sT2}, v{vTm+2}", f"s_cmp_lg_u64 s[{sF}:{sF+1}], 0", f"s_cselect_b32 s{sT2}, 1, 0",
                                 f"v_mov_b32 v{vTm+1}, s{sT2}", f"ds_write_b32 v{vTm}, v{vTm+1}")]
        if par:
            o = nc + rd("c") + norm("a0") + st("c") + rd("a0") + norm("a1") + st("a0") + rd("a1") + norm("b0") + st("a1")
        else:
            o = norm("a0") + rd("a0") + nc + st("a0") + rd("c") + norm("a1") + st("c") + rd("a1") + norm("b0") + st("a1")
        o += rd("b0") + norm("b1") + st("b0") + rd("b1") + flag + st("b1")
        g = chain(G, o, at["pv", "a0"], len(G) - 4, run=20)[-1] + 1
        self.barrier(G[g], "x")
        G[g].add(Op(f"ds_read_b128 {vr(vD,4)}, v{vTm+2}"))
        G[g + 1].valu += [Op(f"v_or3_b32 v{vD}, v{vD}, v{vD+1}, v{vD+2}"), Op(f"v_or_b32 v{vD}, v{vD}, v{vD+3}")]
        G[g + 1].post += [Op(s) for s in self.fin(par)]
        return G[:g + 2]

    def header(self):
        for line in open(f"cdna_kernels/{NAME}.s.ref").read().split("\n"):
            if line.startswith("; @launch"):
                break
            self.L.append(line)
        self.L += [f"; @launch grid=(256,1,1) block=(256,1,1) lds={LDS_BYTES}", '.amdgcn_target "amdgcn-amd-amdhsa--gfx950"', ".text",
                   f".globl {NAME}_kernel", ".p2align 12", ".p2align 8", f".type {NAME}_kernel,@function", f"{NAME}_kernel:"]

    def footer(self):
        self.L += ['.section .rodata,"a"', ".p2align 6", f".amdhsa_kernel {NAME}_kernel", "  .amdhsa_next_free_vgpr 512",
                   "  .amdhsa_next_free_sgpr 102", "  .amdhsa_accum_offset 256", "  .amdhsa_group_segment_fixed_size 0",
                   "  .amdhsa_kernarg_size 48", "  .amdhsa_user_sgpr_count 2", "  .amdhsa_user_sgpr_kernarg_segment_ptr 1",
                   "  .amdhsa_system_sgpr_workgroup_id_x 1", ".end_amdhsa_kernel"]

    def setup(self):
        t, lane = vTm, vL
        o = ["s_cmp_ge_u32 s2, 256", "s_cbranch_scc1 L_end", "s_load_dwordx4 s[4:7], s[0:1], 0", "s_load_dwordx4 s[8:11], s[0:1], 16"]
        if self.stamps:
            o += [f"s_load_dwordx2 s[{sWS}:{sWS+1}], s[0:1], 40", "s_memtime s[56:57]", "s_memrealtime s[58:59]", f"s_mov_b32 s{sNst}, 1"]
        o += ["v_lshrrev_b32 v1, 6, v0", f"v_and_b32 v{lane}, 63, v0", f"v_readfirstlane_b32 s{sW}, v1",
              f"v_bfe_u32 v{t}, v{lane}, 2, 2", f"v_lshlrev_b32 v{vDMA}, 8, v{t}", f"v_lshrrev_b32 v{t}, 4, v{lane}",
              f"v_lshl_add_u32 v{vDMA}, v{t}, 6, v{vDMA}", f"v_and_b32 v{t}, 3, v{lane}", f"v_lshl_add_u32 v{vDMA}, v{t}, 4, v{vDMA}",
              f"s_mul_i32 s{sWStr}, s{sW}, {WSTR}", f"s_mul_i32 s{sT2}, s{sW}, 18432", f"v_lshl_add_u32 v{vOst}, v{lane}, 4, s{sT2}",
              f"s_mul_i32 s{sT0}, s2, 147456", f"s_lshl_b32 s{sT1}, s2, 18", f"s_mov_b32 s{sH}, 0", f"s_mov_b32 s{sBig}, 0x40000000",
              "s_mov_b64 vcc, 0"] + self.warm(0) + ["s_waitcnt lgkmcnt(0)"]
        for d, b, off, n in ((SRD_K, 6, sT1, 262144), (SRD_Q, 4, sT0, 147456), (SRD_V, 8, sT1, 262144 + 10240), (SRD_O, 10, sT0, 147456)):
            o += [f"s_add_u32 s{d}, s{b}, s{off}", f"s_addc_u32 s{d+1}, s{b+1}, 0"]
            if d == SRD_V:
                o += [f"s_sub_u32 s{d}, s{d}, 10240", f"s_subb_u32 s{d+1}, s{d+1}, 0"]
            o += [f"s_mov_b32 s{d+2}, {n}", f"s_mov_b32 s{d+3}, 0x20000"]
        if self.stamps:
            o += [f"v_writelane_b32 v{vSt0}, s56, 0", f"v_writelane_b32 v{vSt0+1}, s58, 0"]
        return o

    def consts(self):
        t, lane, r, g, x = vTm, vL, vTm + 1, vTm + 2, vTm + 3
        c = hex(f2u(128 ** -0.5 * 1.4426950408889634))
        o = [f"v_bfe_u32 v{lane}, v{vOst}, 4, 6", f"s_mov_b32 s{sC}, {c}", f"s_mov_b32 s{sC+1}, {c}",
             f"s_mov_b32 s{sLim}, {hex(f2u(2.0 ** self.lim))}", f"s_mov_b32 s{sMask}, 0xffff0000",
             f"s_mul_i32 s{sWbase}, s{sW}, {WREG}", f"s_add_u32 s{sWbase}, s{sWbase}, {W0}", f"s_sub_u32 s{sDum}, {DUMMY}, s{sWbase}",
             f"v_and_b32 v{r}, 15, v{lane}", f"v_lshrrev_b32 v{g}, 4, v{lane}", f"v_lshlrev_b32 v{vK0}, 4, v{g}",
             f"v_and_b32 v{t}, 3, v{r}", f"v_lshl_add_u32 v{x}, v{t}, 6, v{vK0}",
             f"v_lshlrev_b32 v{vVb}, 3, v{t}", f"v_lshrrev_b32 v{t}, 2, v{r}", f"v_lshl_add_u32 v{vVb}, v{t}, 6, v{vVb}",
             f"v_mul_u32_u24 v{vKb}, {WSTR}, v{t}", f"v_add_u32 v{vKb}, v{vKb}, v{x}",
             f"v_mul_u32_u24 v{t}, {WSTR}, v{g}", f"v_add_u32 v{vVb}, v{vVb}, v{t}",
             f"v_bfe_u32 v{t}, v{r}, 2, 1", f"v_lshl_add_u32 v{x}, v{t}, 10, v{x}", f"v_lshrrev_b32 v{t}, 3, v{r}",
             f"v_mul_u32_u24 v{t}, {GRP}, v{t}", f"v_add_u32 v{x}, v{x}, v{t}",
             f"s_and_b32 s{sT0}, s{sW}, 1", f"s_mul_i32 s{sT0}, s{sT0}, {GRP}", f"s_add_u32 s{sT0}, s{sT0}, s{sWbase}",
             f"s_lshr_b32 s{sT1}, s{sW}, 1", f"s_mul_i32 s{sT2}, s{sT1}, {2*WREG}", f"s_add_u32 s{sT2}, s{sT2}, {W0+8*GRP}",
             f"v_add_u32 v{vQa}, s{sT0}, v{x}", f"v_add_u32 v{vQc}, s{sT2}, v{x}",
             f"v_mul_u32_u24 v{x}, 272, v{r}", f"v_lshl_add_u32 v{x}, v{g}, 3, v{x}",
             f"v_add_u32 v{vStA}, s{sT0}, v{x}", f"v_add_u32 v{vStC}, s{sT2}, v{x}",
             f"v_mul_u32_u24 v{x}, 272, v{g}", f"v_lshl_add_u32 v{x}, v{r}, 4, v{x}", f"v_add_u32 v{x}, s{sWbase}, v{x}",
             f"v_accvgpr_write_b32 a{aStR}, v{x}", f"v_lshl_add_u32 v{vAuxB}, v{lane}, 4, s{sWbase}", f"v_mov_b32 v{vAux}, v{vAuxB}",
             f"s_mul_i32 s{sT0}, s{sT1}, {2*WSTR}", f"v_lshl_add_u32 v{vXc}, v{lane}, 4, s{sT0}",
             f"s_lshl_b32 s{sT0}, s{sT1}, 7", f"s_add_u32 s{sT0}, s{sT0}, {LX}", f"v_lshl_add_u32 v{vLx}, v{r}, 2, s{sT0}",
             f"v_mov_b32 v{vChk}, 0", f"v_add_u32 v{vK}, {4*STAGE}, v{vKb}", f"v_mov_b32 v{vV}, v{vVb}",
             f"v_and_b32 v{t}, 3, v{lane}", f"v_cmp_eq_u32 s[{sF}:{sF+1}], 0, v{t}", f"v_mov_b32 v{x}, 0x3f803f80", "s_nop 1",
             f"v_cndmask_b32 v{x}, 0, v{x}, s[{sF}:{sF+1}]"]
        o += [f"v_accvgpr_write_b32 a{aOne+i}, v{x}" for i in range(4)]
        o += [f"v_mov_b64 {vr(168+2*i,2)}, 0" for i in range(28)]
        o += [f"v_mov_b64 {vr(vP['b0']+2*i,2)}, 0" for i in range(4)]
        o += [f"v_accvgpr_write_b32 a{i}, 0" for i in list(range(aO, aO + 32)) + list(range(aV, aV + 52))]
        o += [f"s_mov_b32 s{sRd}, 0", f"s_mov_b32 s{sT}, 14", f"s_mov_b32 s{sQm0}, s{sWbase}",
              f"s_mul_i32 s{sQoff}, s{sW}, 18432", f"s_add_u32 s{sQoff}, s{sQoff}, 73728", f"s_mov_b32 s{sRel}, {(-GRP) & 0xffffffff}"]
        return o

    def mark(self):
        if self.stamps < 2:
            return []
        return ["s_memtime s[56:57]", "s_memrealtime s[58:59]", f"s_mov_b32 s{sM0s}, m0", f"s_mov_b32 m0, s{sNst}", f"s_add_u32 s{sNst}, s{sNst}, 1",
                "s_waitcnt lgkmcnt(0)", f"v_writelane_b32 v{vSt0}, s56, m0", f"v_writelane_b32 v{vSt0+1}, s58, m0", f"s_mov_b32 m0, s{sM0s}", "s_nop 0"]

    def start(self):
        up = self.opt.get("up", 14)
        qd = [96 + 4 * j for j in range(18)]
        wA, wC, sA, sCc = vR + 2, vR + 3, 60, 61
        o = ["L_start:"] + self.mark() + [f"s_lshl_b32 s{sOff}, s{sW}, 11", f"s_add_u32 m0, s{sWStr}, {4*STAGE}",
             f"s_mul_i32 s{sT0}, s{sH}, 73728", f"s_mul_i32 s{sT1}, s{sW}, 18432"] + self.stage()[:2]
        o += [f"s_add_u32 s{sT0}, s{sT0}, s{sT1}", f"s_add_u32 s{sOff}, s{sOff}, 8192", f"s_and_b32 s{sT1}, s{sW}, 1",
              f"s_lshl_b32 s{sA}, s{sT1}, 11", f"s_add_u32 s{sA}, s{sA}, s{sT0}", f"s_xor_b32 s{sT1}, s{sT1}, 1",
              f"s_lshl_b32 s{sCc}, s{sT1}, 14", f"s_add_u32 s{sCc}, s{sCc}, s{sT0}"]
        todo = []
        for j in range(18):
            k, sr = (j, sCc) if j < 2 else (j - 2, sA)
            of = f" offset:{(k%4)*1024}" if k % 4 else ""
            todo.append([f"buffer_load_dwordx4 {vr(qd[j],4)}, v{vDMA}, s[{SRD_Q}:{SRD_Q+3}], s{sr} offen{of} {self.opt.get('ldq', self.ld)}"] +
                        ([f"s_add_u32 s{sA}, s{sA}, 4096"] if k % 4 == 3 else []))
        for g in range(4):
            st = self.stage()
            todo += [[f"s_add_u32 m0, s{sWStr}, {g*STAGE}", st[0]], [st[1]], [st[2]],
                     [st[3], f"s_add_u32 s{sOff}, s{sOff}, 8192", self.dummy(0), self.dummy(1)]]
        n = 2

        def issue(k):
            nonlocal n
            r = [t for it in todo[:k] for t in it]
            del todo[:k]
            n += sum(t.startswith("buffer") for t in r)
            return r

        o += issue(up) + self.mark() + self.consts()
        o += [f"s_and_b32 s{sT0}, s{sW}, 1", f"s_mul_i32 s{sT1}, s{sT0}, {GRP}", f"v_add_u32 v{wA}, s{sT1}, v{vAuxB}",
              f"s_mul_i32 s{sT1}, s{sT0}, {8*GRP}", f"v_subrev_u32 v{wC}, s{sT1}, v{vAuxB}", f"v_add_u32 v{vL}, {4*STAGE}, v{vK0}"]
        o += self.mark() + self.warm(1) + self.mark()
        lg0 = "s_waitcnt lgkmcnt(0)"
        for j in range(18):
            o.append(f"s_waitcnt vmcnt({n-3-j})")
            o += self.mark() if j in (0, 8, 17) else []
            o += issue(1)
            for i in range(4):
                o += scale(qd[j] + i, i, True)
            x = {4: "c", 7: "a0", 11: "a1", 15: "b0"}
            if j in x:
                o += [lg0] + mchain(x[j])
            if j - 1 in x:
                o += negate(x[j - 1])
            if j == 9:
                o += [qk("a0", f) for f in range(8)]
            k = j - 2
            o.append(f"ds_write_b128 v{wC}, {vr(qd[j],4)} offset:{8*GRP+j*1024}" if j < 2 else
                     f"ds_write_b128 v{wA}, {vr(qd[j],4)} offset:{(k>>1)*GRP+(k&1)*1024}")
            if j == 1:
                o += [lg0, "s_barrier"] + [f"ds_read_b128 {ar(aK0+4*ks,4)}, v{vL} offset:{ks*256}" for ks in range(4)]
                o += [qread("c", ks) for ks in range(4)] + [kread(f) for f in range(8)]
            elif j % 4 == 1:
                o += [qread(XS[j // 4 - 1], ks) for ks in range(4)]
            if j:
                o += [f"v_mov_b64 {vr(qd[j-1]+2*i,2)}, 0" for i in range(2)]
        o += self.mark() + issue(99) + [f"s_add_u32 m0, s{sWStr}, {4*STAGE}"] + [f"v_mov_b64 {vr(qd[17]+2*i,2)}, 0" for i in range(2)]
        o += ["s_cbranch_vccnz L_prepass", lg0] + mchain("b1") + negate("b1")
        o += ["L_fix0r:", f"v_mov_b32 v{vK}, v{vKb}", f"s_bitcmp1_b32 s{sW}, 0", "s_cbranch_scc0 L_N0"]
        self.fix += ["L_prepass_ret:"] + [kread(f) for f in range(8)]
        self.fix += [f"v_accvgpr_read_b32 v{vM[x]+i}, a{aSave+n}" for n, x in enumerate(XS) for i in range(4)]
        self.fix += [lg0] + [qk("a0", f) for f in range(8)] + ["s_nop 7", "s_branch L_fix0r"]
        return o

    def warm(self, ph):
        if not self.opt.get("warm", 3) & (1 << ph):
            return ["L_w" + "ab"[ph] + ":"]
        if ph:
            return [t for w in range(4) for t in (f"s_cmp_eq_u32 s{sW}, {w}", f"s_cbranch_scc1 L_pb{w}")] + ["L_wb:"]
        o = ["s_lshr_b32 s60, s2, 1", "s_and_b32 s60, s60, 12", f"s_add_u32 s60, s60, s{sW}"]
        return o + [t for k in range(self.npg) for t in (f"s_cmp_eq_u32 s60, {k}", f"s_cbranch_scc1 L_pa{k}")] + ["L_wa:"]

    def prepass(self):
        a, m = vR, vD
        o = ["L_prepass:", f"v_bfe_u32 v{a}, v{vOst}, 4, 4", f"v_lshl_add_u32 v{a}, v{a}, 8, v{vK0}", f"v_add_u32 v{a+1}, 4096, v{a}"]
        o += [f"v_mov_b32 v{m+n}, 0xff800000" for n in range(5)]
        o += [f"s_lshl_b32 s{sT0}, s{sH}, 17", f"s_mov_b32 s{sT1}, 16", "L_prepass_loop:"]
        o += [f"buffer_load_dwordx4 {ar(aK+4*f,4)}, v{a+(f>>2)}, s[{SRD_K}:{SRD_K+3}], s{sT0} offen offset:{(f&3)*64}" for f in range(8)]
        o.append("s_waitcnt vmcnt(0) lgkmcnt(0)")
        o += [qk(x, f, True) for x in XS for f in range(8)]
        o += [f"v_max3_f32 v{m+n}, v{m+n}, v{vS[x]+2*i}, v{vS[x]+2*i+1}" for n, x in enumerate(XS) for i in range(4)]
        o += [f"s_add_u32 s{sT0}, s{sT0}, 8192", f"s_sub_u32 s{sT1}, s{sT1}, 1", f"s_cmp_lg_u32 s{sT1}, 0", "s_cbranch_scc1 L_prepass_loop"]
        for n in range(5):
            for sw in ("v_permlane16_swap_b32", "v_permlane32_swap_b32"):
                o += [f"v_mov_b32 v{a}, v{m+n}", f"{sw} v{m+n}, v{a}", f"v_max_f32 v{m+n}, v{m+n}, v{a}"]
            o += [f"v_sub_f32 v{m+n}, 0, v{m+n}", f"v_accvgpr_read_b32 v{a}, a{aSave+n}", f"v_accvgpr_write_b32 a{aSave+5+n}, v{a}",
                  f"v_accvgpr_write_b32 a{aSave+n}, v{m+n}"]
        o += [f"s_cmp_eq_u32 s{sH}, 0", "s_cbranch_scc1 L_prepass_ret", f"s_mov_b32 s{sH}, 0", "s_barrier", "s_branch L_start"]
        return o

    def fin(self, par):
        o = ["s_nop 0", f"v_readfirstlane_b32 s{sT2}, v{vD}", f"s_cbranch_vccnz L_done{par}", f"s_cmp_lg_u32 s{sT2}, 0"]
        if not self.opt.get("noredo"):
            o.append("s_cbranch_scc1 L_redo")
        o.append(f"L_done{par}:")
        if self.stamps:
            o += ["s_waitcnt vmcnt(0)", "s_memtime s[56:57]", "s_memrealtime s[58:59]", f"s_mov_b32 m0, s{sNst}", "s_waitcnt lgkmcnt(0)",
                  f"v_writelane_b32 v{vSt0}, s56, m0", f"v_writelane_b32 v{vSt0+1}, s58, m0",
                  f"s_mov_b32 s{sWS+2}, 0x100000", f"s_mov_b32 s{sWS+3}, 0x20000", f"s_lshl_b32 s{sT0}, s2, 2", f"s_add_u32 s{sT0}, s{sT0}, s{sW}",
                  f"s_lshl_b32 s{sT0}, s{sT0}, 9", f"v_bfe_u32 v{vTm}, v{vOst}, 4, 6", f"v_lshlrev_b32 v{vTm}, 2, v{vTm}",
                  f"buffer_store_dword v{vSt0}, v{vTm}, s[{sWS}:{sWS+3}], s{sT0} offen",
                  f"buffer_store_dword v{vSt0+1}, v{vTm}, s[{sWS}:{sWS+3}], s{sT0} offen offset:256"]
        return o + ["s_endpgm"]

    def redo(self):
        return ["L_end:", "s_endpgm", "L_redo:", "s_mov_b64 vcc, -1", f"s_mov_b32 s{sH}, 1", "s_waitcnt vmcnt(0) lgkmcnt(0)", "s_barrier", "s_branch L_start"]

    def layout(self, segs):
        out, npg = [], 0
        for ops in segs:
            pos, first = (0, True) if out else (96, False)
            for t in ops:
                sz = isize(t)
                if first or (pos + sz > 4096 - 4 and not t.endswith(":")):
                    if not first:
                        out.append(f"s_branch L_pg{npg}")
                    out += [".p2align 12", f"L_pa{npg}:", "s_branch L_wa", f"L_pb{npg}:", f"s_branch @{npg}", f"L_pg{npg}:"]
                    npg, pos, first = npg + 1, 8, False
                out.append(t)
                pos += sz
        assert self.npg == npg
        return [(f"s_branch L_pb{int(t[10:])+4}" if int(t[10:]) + 4 < npg else "s_branch L_wb") if t.startswith("s_branch @") else t for t in out]

    def build(self):
        N, A, B = self.period(0, "N"), self.period(6, "A"), self.period(20, "B")
        T = [self.trans(0), self.trans(1)]
        E = [self.tail(0), self.tail(1)]
        N[0].lab, N[85].lab, A[0].lab, B[0].lab = ["L_N0:"], ["L_N85:"], ["L_A0:"], ["L_B0:"]
        T[0][0].lab, E[0][0].lab = ["L_Ax:"], ["L_Bx:"]
        vq = []
        for g in range(4):
            vq += [(Op(o), g) for o in self.stage()] + [(Op("s_nop 0"), None)] * 2
        tr = [N * 3 + A * 4 + A[:85] + T[0] + B * 6 + B[:85] + E[0], N[85:] + N * 2 + A * 5 + T[1] + B * 6 + E[1]]
        insert_waits([(t, vq) for t in tr])
        seg = {}
        for n, G in (("N", N), ("A", A), ("B", B), ("T0", T[0]), ("T1", T[1]), ("E0", E[0]), ("E1", E[1])):
            ops = [o for g in G for o in g.ops()]
            seg[n] = check_hazards(ops, n, True)
            print(n, "gaps", len(G), "ops", len(ops), "nops", len(seg[n]) - len(ops), "est", int(sum(gcost(g) + (16.3 if g.mfma else 0) + (9 if g.bar else 0) for g in G)),
                  "vm", [g.vm for g in G if g.vm is not None], file=sys.stderr)
        tx = {n: [o.t for o in seg[n]] for n in seg}
        upto = lambda n: seg[n][:tx[n].index(f"s_cbranch_scc1 L_{n}x") + 1]
        for a, b in [(seg[x], seg[y]) for x, y in ("NN", "NA", "AA", "BB", ("A", "T1"), ("T0", "B"), ("T1", "B"), ("B", "E1"))] + [(upto("A"), seg["T0"]), (upto("B"), seg["E0"])]:
            assert check_hazards(a[-14:] + b[:14], "seam") == 0
        fx = lambda l: [o.t for o in check_hazards([Op(t) for t in l], "s", True)]
        self.npg = 10
        head = fx(self.setup() + self.start()) + tx["N"][tx["N"].index("L_N85:") + 1:-1] + ["s_branch L_N0"] + self.redo()
        assert tx["N"][-1] == "s_cbranch_scc1 L_N0"
        body = self.layout([head, tx["N"] + ["s_branch L_A0"], tx["A"] + ["s_branch L_T1"], ["L_T1:"] + tx["T1"], tx["T0"],
                            tx["B"] + ["s_branch L_E1"], ["L_E1:"] + tx["E1"], tx["E0"]])
        self.header()
        self.many(body + self.fix + fx(self.prepass()))
        self.footer()
        return "\n".join(self.L) + "\n"


if __name__ == "__main__":
    out = sys.argv[1]
    kw = {}
    for a in sys.argv[2:]:
        k, v = a.split("=")
        kw[k] = int(v) if v.lstrip("-").isdigit() else v.replace("_", " ")
    open(out, "w").write(Gen(**kw).build())
```

```python
import struct
import sys
from sched import Op, Gap, place, chain, gcost, insert_waits, check_hazards

NAME = "standalone__mha_softmax__near_ridge"

WSTR = 4128
STAGE = 4 * WSTR
RING = 5 * STAGE
GRP = 2176
W0 = RING
WREG = 9 * GRP
DUMMY = W0 + 4 * WREG
LX = DUMMY + 2048
FLAG = LX + 256
LDS_BYTES = FLAG + 64
assert LDS_BYTES <= 163840

sW = 3
SRD_Q, SRD_K, SRD_V, SRD_O = 12, 16, 20, 24
sC = 28
sRd, sOff, sWStr, sT, sH, sBig = 30, 31, 32, 33, 34, 35
sQm0, sQoff, sRel, sDum, sWbase = 36, 37, 38, 39, 40
sT0, sT1, sT2, sLim, sMask, sM0s, sNst = 41, 42, 43, 44, 45, 46, 47
sF = 48
sWS = 52

vOst, vDMA, vKb, vVb, vK, vV, vQa, vQc, vStA, vStC, vAux, vAuxB, vXc, vLx, vChk, vK0 = range(16)
XS = ["a0", "a1", "b0", "b1", "c"]
vS = {x: 16 + 8 * i for i, x in enumerate(XS)}
vP = {x: 56 + 4 * i for i, x in enumerate(XS)}
vM = {x: 76 + 4 * i for i, x in enumerate(XS)}
vO = {x: 96 + 32 * i for i, x in enumerate(XS[:4])}
vR, vTm, vL, vDead, vSt0, vD = 224, 228, 232, 236, 238, 240
aO = 0
aQ = {x: 32 + 16 * i for i, x in enumerate(XS)}
aK, aV = 112, 144
aL = {x: 176 + 4 * i for i, x in enumerate(XS)}
aOne, aK0, aSave, aStR = 196, 200, 216, 226
MF = "v_mfma_f32_16x16x32_bf16"
SEQ = [("qk", "a1", 0), ("pv", "b", -1), ("qk", "c", 0), ("qk", "b0", 0), ("pv", "a", 0), ("qk", "b1", 0), ("pv", "c", 0),
       ("qk", "a0", 1), ("qk", "a1", 1), ("pv", "b", 0), ("qk", "b0", 1), ("qk", "b1", 1), ("pv", "a", 1), ("qk", "a0", 2)]
UNITS = [("a0", 0), ("a1", 0), ("c", 0), ("b0", 0), ("b1", 0), ("a0", 1), ("a1", 1), ("b0", 1), ("b1", 1)]


def f2u(x):
    return struct.unpack("<I", struct.pack("<f", x))[0]


def vr(b, n=1):
    return f"v{b}" if n == 1 else f"v[{b}:{b+n-1}]"


def ar(b, n=1):
    return f"a{b}" if n == 1 else f"a[{b}:{b+n-1}]"


def qk(x, f, zero=False):
    kt, ks = f >> 2, f & 3
    d = vr(vS[x] + 4 * kt, 4)
    c = d if ks else ("0" if zero else vr(vM[x], 4))
    return f"{MF} {d}, {ar(aK+4*f,4)}, {ar(aQ[x]+4*ks,4)}, {c}"


def pvgroup(X, first):
    xs = [X + "0", X + "1"] if X in "ab" else [X]
    r = [f"{MF} {ar(aL[x],4)}, {ar(aOne,4)}, {vr(vP[x],4)}, {'0' if first else ar(aL[x],4)}" for x in xs]
    for dt in range(8):
        for x in (xs if dt % 2 == 0 else xs[::-1]):
            o = ar(aO + 4 * dt, 4) if x == "c" else vr(vO[x] + 4 * dt, 4)
            r.append(f"{MF} {o}, {ar(aV+4*dt,4)}, {vr(vP[x],4)}, {'0' if first else o}")
    return r


def mchain(x):
    d = vr(vM[x], 4)
    return [f"{MF} {d}, {ar(aK0+4*ks,4)}, {ar(aQ[x]+4*ks,4)}, {d if ks else '0'}" for ks in range(4)]


def negate(x):
    return [f"v_sub_f32 v{vM[x]+i}, 0, v{vM[x]+i}" for i in range(4)]


def kread(f):
    return f"ds_read_b128 {ar(aK+4*f,4)}, v{vK} offset:{(f>>2)*1024+(f&3)*256}"


def vread(dt, s):
    return f"ds_read_b64_tr_b16 {ar(aV+4*dt+2*s,2)}, v{vV} offset:{2048+s*1024+(dt>>1)*256+(dt&1)*32}"


def qread(x, ks):
    a, b = (vQc, 0) if x == "c" else (vQa, XS.index(x) * 2 * GRP)
    return f"ds_read_b128 {ar(aQ[x]+4*ks,4)}, v{a} offset:{b+ks*256}"


def scale(d, n, pk=False):
    t = vTm + 2 * (n & 1)
    mul = [f"v_pk_mul_f32 {vr(t,2)}, {vr(t,2)}, s[{sC}:{sC+1}]"] if pk else [f"v_mul_f32 v{t+i}, s{sC}, v{t+i}" for i in range(2)]
    return [f"v_lshlrev_b32 v{t}, 16, v{d}", f"v_and_b32 v{t+1}, s{sMask}, v{d}"] + mul + [f"v_cvt_pk_bf16_f32 v{d}, v{t}, v{t+1}"]


def isize(op):
    if op.endswith(":"):
        return 0
    m = op.split()[0]
    if m.startswith(("v_mfma", "ds_", "buffer_", "v_cvt_pk", "v_pk_", "v_accvgpr", "v_lshl_add", "s_mem", "v_or3", "v_add3", "v_bfe", "v_writelane", "v_cmp")):
        return 8
    if m.startswith(("s_waitcnt", "s_barrier", "s_cbranch", "s_branch", "s_nop")):
        return 4
    for a in op[len(m):].split(","):
        try:
            if not -16 <= int(a.strip(), 0) <= 64:
                return 8
        except ValueError:
            pass
    return 4


def idx(G, *key):
    return [g.id for g in G].index(key)


class Gen:
    def __init__(self, ld="nt", st="sc0 sc1", stamps=0, lim=40, st0=22, **opt):
        self.L, self.ld, self.st, self.stamps, self.lim, self.st0, self.opt = [], ld, st, stamps, lim, st0, opt
        self.fix = []
        self.ng = {"B": opt.get("gb", 1), "C": opt.get("gc", 2)}

    def e(self, s):
        self.L.append(s if s.endswith(":") else "    " + s)

    def many(self, lst):
        for s in lst:
            self.e(s)

    def dma(self, srd, soff, off):
        o = f" offset:{off}" if off else ""
        return f"buffer_load_dwordx4 v{vDMA}, s[{srd}:{srd+3}], s{soff} offen{o} {self.opt.get('ld' + 'qkv'[(srd - SRD_Q) >> 2], self.ld)} lds"

    def stage(self):
        return [self.dma(SRD_K, sOff, 0), self.dma(SRD_K, sOff, 1024), self.dma(SRD_V, sOff, 2048), self.dma(SRD_V, sOff, 3072)]

    def dummy(self, i):
        return f"buffer_load_dword v{vDead+i}, v{vOst}, s[{SRD_Q}:{SRD_Q+3}], s{sBig} offen"

    def store(self, d, soff, off):
        o = f" offset:{off}" if off else ""
        return f"buffer_store_dwordx4 {vr(d,4)}, v{vOst}, s[{SRD_O}:{SRD_O+3}], s{soff} offen{o} {self.st}"

    def barrier(self, g, kind):
        g.bar = kind
        if self.stamps:
            g.lg = 0
            g.pre = [Op("s_memtime s[56:57]"), Op("s_memrealtime s[58:59]")]
            g.aft = [Op(t) for t in (f"s_mov_b32 s{sM0s}, m0", f"s_mov_b32 m0, s{sNst}", f"s_add_u32 s{sNst}, s{sNst}, 1", "s_nop 3",
                                     f"v_writelane_b32 v{vSt0}, s56, m0", f"v_writelane_b32 v{vSt0+1}, s58, m0", f"s_mov_b32 m0, s{sM0s}", "s_nop 0")]

    def period(self, t0, flav):
        G = []
        for kind, x, d in SEQ:
            t = t0 + d
            ms = [qk(x, f) for f in range(8)] if kind == "qk" else pvgroup(x, flav == "T" and (t == 16 or (x == "c" and t == 17)))
            for i, m in enumerate(ms):
                G.append(Gap(m if t < 32 else None))
                G[-1].id = (kind, x, t, i)
        assert len(G) == 153
        for k, (x, d) in enumerate(UNITS):
            if t0 + d < 32:
                for i in range(8):
                    G[17 * k + 2 * i].add(Op(f"v_exp_f32 v{vS[x]+i}, v{vS[x]+i}"))
                for j in range(4):
                    G[17 * k + 4 * j + 3].add(Op(f"v_cvt_pk_bf16_f32 v{vP[x]+j}, v{vS[x]+2*j}, v{vS[x]+2*j+1}"))
        for h, (B, pv0, pa, k0, kn, ck) in enumerate(((9, 8, 42, 60, 77, 84), (86, 93, 127, 119, 145, 152))):
            t = t0 + h
            if t >= 32:
                continue
            self.barrier(G[B], "ring")
            G[B].id2 = ("bar", t)
            G[ck].full = flav in "AC" or (flav in "NB" and h == 1)
            g = B
            if flav == "T" and t == 16:
                X = B + (13 if h == 0 else 12)
                par = t0 & 1
                self.xwrite(G, par, B + 1, X - 3)
                self.barrier(G[X], "x")
                g = self.xread(G, par, X + 1, X + 6) + 6
                G[g + 1].need = "ds"
                self.xpos = G[g + 1]
            for o in self.stage()[2 + 2 * h if flav == "C" else 0:]:
                g = place(G, o, g + 1, g + 6, tag="stage")
            if flav == "A":
                r0 = chain(G, [(f"s_add_u32 s{sRel}, s{sRel}, {GRP}", 1), (f"s_cmp_lt_u32 s{sRel}, {WREG}", 1),
                               (f"s_cselect_b32 s{sT1}, s{sRel}, s{sDum}", 1), (f"v_add_u32 v{vAux}, s{sT1}, v{vAuxB}", 0)] +
                           [(f"ds_read_b128 {vr(vD+4*p,4)}, v{vAux} offset:{1024*p}", 0) for p in range(2)], B + 1, B + 14)
                assert r0[2] <= g
            gv = 0
            for dt in range(8):
                for s in range(2):
                    gv = max(gv, place(G, vread(dt, s), max(B + 1, pv0 + 3 + 2 * dt), pa + 2 * dt - 4))
            if t + 1 >= 32:
                continue
            gk = 0
            for f in range(8):
                gk = max(gk, place(G, kread(f), k0 + f, kn + f - 7))
            ops = [(f"s_add_u32 s{sOff}, s{sOff}, 8192", 1)]
            adv = [(f"s_add_u32 m0, s{sRd}, s{sWStr}", 1), (f"s_add_u32 s{sRd}, s{sRd}, {STAGE}", 1),
                   (f"s_cmp_eq_u32 s{sRd}, {RING}", 1), (f"s_cselect_b32 s{sRd}, 0, s{sRd}", 1),
                   (f"v_add_u32 v{vV}, s{sRd}, v{vVb}", 0, gv), (f"v_add_u32 v{vK}, s{sRd}, v{vKb}", 0, gk)]
            side = None
            if flav == "A":
                ops += [(f"s_cmp_ge_u32 s{sT}, 6", 1), (f"s_cselect_b32 m0, s{sQm0}, {DUMMY}", 1),
                        (f"s_cselect_b32 s{sT0}, s{sQoff}, s{sBig}", 1),
                        (self.dma(SRD_Q, sT0, 0), 1), (self.dma(SRD_Q, sT0, 1024), 1),
                        (f"s_add_u32 s{sQm0}, s{sQm0}, {GRP}", 1), (f"s_add_u32 s{sQoff}, s{sQoff}, 2048", 1)]
                side = []
                for p in range(2):
                    for i in range(4):
                        side += [(o, 0) for o in scale(vD + 4 * p + i, i)]
                    side.append((f"ds_write_b128 v{vAux}, {vr(vD+4*p,4)} offset:{1024*p}", 0))
            elif flav == "N":
                ops += [(f"s_mov_b32 m0, s{sQm0}", 1), (self.dma(SRD_Q, sQoff, 0), 1), (self.dma(SRD_Q, sQoff, 1024), 1),
                        (f"s_add_u32 s{sQm0}, s{sQm0}, {GRP}", 1), (f"s_add_u32 s{sQoff}, s{sQoff}, 2048", 1), (f"s_sub_u32 s{sT}, s{sT}, 1", 1)]
            elif flav in "BC" and self.ng[flav]:
                n = self.ng[flav]
                reg = [vD + 4 * p for p in range(4)] + [vR, vR + 4]
                rd = [(f"ds_read_b128 {vr(reg[p],4)}, v{vAux} offset:{1088*p}", 0, 0, 999, "priv") for p in range(2 * n)]
                st = [(self.store(reg[p], sT1 if p > 3 else sT0, (p & 3) * 1024), 4 if p else 5) for p in range(2 * n)]
                ops += rd[:2] + [(f"s_cmp_lt_u32 s{sRel}, 18432", 1), (f"s_cselect_b32 s{sT0}, s{sRel}, s{sBig}", 1),
                                 (f"s_add_u32 s{sRel}, s{sRel}, {2048*n}", 1)] + [(f"s_add_u32 s{sT1}, s{sT0}, 4096", 1)] * (n > 2)
                for p in range(2 * n):
                    ops += [st[p]] + rd[p + 2:p + 3]
                ops.append((f"v_add_u32 v{vAux}, {n*GRP}, v{vAux}", 0))
            elif flav == "T" and self.ng["B"]:
                ops += [(self.dummy(0), 1), (self.dummy(1), 1)]
            chain(G, ops + adv, g + 1, ck - 2)
            if side and not self.opt.get("noscale"):
                chain(G, side, r0[-1] + 7, ck - self.opt.get('sidehi', 5))
            if flav in "AC" or (flav == "B" and h):
                place(G, f"s_sub_u32 s{sT}, s{sT}, 1", ck - 1, ck - 1)
                G[ck].sc.append(Op(f"s_cbranch_scc1 L_{flav}x" if h == 0 else f"s_cbranch_scc0 L_{flav}0"))
            if flav == "N" and h == 1:
                place(G, f"s_cmp_ge_u32 s{sT}, 10", ck - 1, ck - 1)
                G[ck].sc.append(Op("s_cbranch_scc1 L_N0"))
        return G

    def xwrite(self, G, par, lo, hi):
        o = [(f"ds_write_b128 v{vXc}, {ar(aO+16*(1-par)+4*j,4)} offset:{(1-par)*WSTR+1024*j}", 0) for j in range(4)]
        o.append((f"ds_write_b32 v{vLx}, {ar(aL['c'])} offset:{(1-par)*64}", 0))
        return chain(G, o, lo, hi)[-1]

    def xread(self, G, par, lo, hi):
        o = [(f"ds_read_b128 {vr(vD+4*j,4)}, v{vXc} offset:{par*WSTR+1024*j}", 0, 0, 999, "x") for j in range(4)]
        o.append((f"ds_read_b32 v{vL}, v{vLx} offset:{par*64}", 0, 0, 999, "x"))
        return chain(G, o, lo, hi)[-1]

    def norm_c(self, par, pk=False):
        r = vL + 2
        o = [f"v_accvgpr_read_b32 v{vL+1}, {ar(aL['c'])}", f"v_add_f32 v{vL}, v{vL}, v{vL+1}", f"v_rcp_f32 v{r}, v{vL}",
             f"v_add_f32 v{vChk}, v{vChk}, v{vL}"]
        for j in range(4):
            d = vD + 4 * j
            o += [f"v_accvgpr_read_b32 v{vTm+i}, {ar(aO+16*par+4*j+i)}" for i in range(4)]
            if pk:
                o += [f"v_pk_add_f32 {vr(d+i,2)}, {vr(d+i,2)}, {vr(vTm+i,2)}" for i in (0, 2)] + self.pkmul(d, r)
            else:
                o += [f"v_add_f32 v{d+i}, v{d+i}, v{vTm+i}" for i in range(4)] + [f"v_mul_f32 v{d+i}, v{d+i}, v{r}" for i in range(4)]
            o += self.pack(d, vStC, (4 * par + j) * 32)
        return [(t, 0) for t in o]

    def pkmul(self, d, r):
        return [f"v_pk_mul_f32 {vr(d+i,2)}, {vr(d+i,2)}, {vr(r,2)} op_sel_hi:[1,0]" for i in (0, 2)]

    def pack(self, d, addr, off):
        return [f"v_cvt_pk_bf16_f32 v{d}, v{d}, v{d+1}", f"v_cvt_pk_bf16_f32 v{d+1}, v{d+2}, v{d+3}", f"ds_write_b64 v{addr}, {vr(d,2)} offset:{off}"]

    def norm(self, G, X, t, tn, lo, hi, nb=1):
        p = idx(G, "pv", X, t, 0)
        n = idx(G, "pv", X, tn, 0) if tn else 9999
        o = [(f"v_accvgpr_read_b32 v{vR+2*q+1}, {ar(aL[X+str(q)])}", 0) for q in range(2)]
        for q in range(2):
            o += [(f"v_rcp_f32 v{vR+2*q}, v{vR+2*q+1}", 0), (f"v_add_f32 v{vChk}, v{vChk}, v{vR+2*q+1}", 0)]
        g = chain(G, o, max(lo, p + 6), max(lo, p + 6) + 10)[-1]
        o = []
        per = 8 // nb
        for k in range(nb):
            dts = range(per * k, per * k + per)
            g = max(g + 1, p + 3 + 2 * dts[-1])
            while G[g].valu or G[g].bar:
                g += 1
            for dt in dts:
                for q in range(2):
                    x = X + str(q)
                    for s in self.pkmul(vO[x] + 4 * dt, vR + 2 * q):
                        G[g].add(Op(s))
                    o += [(s, 0, g, n + 2 * dt) for s in self.pack(vO[x] + 4 * dt, vStA, XS.index(x) * 2 * GRP + dt * 32)]
        return g, o

    def trans(self, par):
        if par == 0:
            G = self.period(14, "T")[85:] + self.period(16, "T")
            ins = {"a0": ("pv", "a", 15), "a1": ("qk", "a0", 16), "c": ("qk", "a1", 16), "b0": ("pv", "b", 15), "b1": ("qk", "c", 16)}
        else:
            G = self.period(15, "T") + self.period(17, "T")
            ins = {"a0": ("qk", "b1", 15), "a1": ("pv", "c", 15), "c": ("qk", "a0", 16), "b0": ("qk", "a1", 16), "b1": ("pv", "b", 15)}
        for x, key in ins.items():
            i = idx(G, *key, 0)
            new = [Gap(m) for m in mchain(x)]
            for n, g in enumerate(new):
                g.id = ("m", x, 16, n)
            G[i:i] = new
        b15 = [getattr(g, "id2", None) for g in G].index(("bar", 15))
        b16 = [getattr(g, "id2", None) for g in G].index(("bar", 16))
        m0 = idx(G, "m", "a0", 16, 0)
        chain(G, [(f"ds_read_b128 {ar(aK0+4*ks,4)}, v{vK0} offset:{ks*256}", 0) for ks in range(4)], b15 + 1, m0 - 8)
        for x in ins:
            last = 15 if (x != "c" or par) else 14
            lo = idx(G, "qk", x, last, 7) if ("qk", x, last, 7) in [g.id for g in G] else 0
            m = idx(G, "m", x, 16, 0)
            free = b16 - 1 if x == "c" else idx(G, "pv", x[0], 15, 0) + 16
            chain(G, [(qread(x, ks), 0) for ks in range(4)], lo, min(m - 8, free))
            nq = idx(G, "qk", x, 17 if (x == "c" and par) else 16, 0)
            lab = f"L_fix{par}{x}"
            r = chain(G, [(o, 0) for o in negate(x)], m + 8, nq - 2)
            G[r[-1]].post += [Op(f"s_cbranch_vccnz {lab}"), Op(f"{lab}r:")]
            self.fix += [f"{lab}:"] + [f"v_accvgpr_read_b32 v{vM[x]+i}, a{aSave+5+XS.index(x)}" for i in range(4)] + ["s_nop 1", f"s_branch {lab}r"]
        ga, oa = self.norm(G, "a", 15, 16, 0, 0)
        gb, ob = self.norm(G, "b", 15, 16, ga, 0)
        xp = G.index(self.xpos)
        todo = [(oa, ga, len(G)), (self.norm_c(par), xp, idx(G, "pv", "c", 16 + par, 0) - 1), (ob, gb, len(G))]
        for k in ((0, 1, 2), (0, 2, 1))[par]:
            chain(G, *todo[k])
        k = (10 - 2 * par) * self.ng["B"] + (3 + par) * self.ng["C"] - 9 - self.opt.get("early", 0)
        assert k >= 0
        chain(G, [(f"v_accvgpr_read_b32 v{vAux}, a{aStR}", 0), (f"v_subrev_u32 v{vAux}, {k*GRP}, v{vAux}", 0),
                  (f"s_mov_b32 s{sRel}, {(-k*2048) & 0xffffffff}", 0), (f"s_mov_b32 s{sT}, {4-par}", 1)], 2, 60)
        G[-1].post.append(Op("s_branch L_B0"))
        txt = [o.t for g in G for o in g.ops()]
        for n, x in enumerate(XS[:4]):
            wr = [i for i, t in enumerate(txt) if t.startswith(f"ds_write_b64 v{vStA},") and int(t.split(":")[-1]) // (2 * GRP) == n]
            assert len(wr) == 8 and min(wr) > max(txt.index(qread(x, ks)) for ks in range(4)), x
        return G

    def tail(self, par):
        seq = [[("qk", "a1"), ("pv", "b"), ("qk", "b0"), ("qk", "b1")],
               [("qk", "c"), ("pv", "b"), ("qk", "a1"), ("qk", "b0"), ("pv", "c"), ("qk", "b1")]][par] + [("pv", x) for x in XS[:4]]
        G, at = [], {}
        for kind, x in seq:
            at[kind, x] = len(G)
            G += [Gap(m) for m in ([qk(x, f) for f in range(8)] if kind == "qk" else pvgroup(x, False))]
        at["qk", "a0"] = -8
        nm = len(G)
        G += [Gap() for _ in range(90)]
        B = 9 if par else 1
        self.barrier(G[B], "ring")
        X = B + 54
        self.barrier(G[X], "x")
        o = []
        for x in [["a0", "a1", "b0", "b1"], ["a0", "c", "a1", "b0", "b1"]][par]:
            q, hi = at["qk", x], at["pv", x] - 2
            for j in range(4):
                lo = q + 8 + 4 * (j >> 1)
                o += [(f"v_exp_f32 v{vS[x]+i}, v{vS[x]+i}", 0, lo, hi) for i in (2 * j, 2 * j + 1)]
                o += [(f"v_cvt_pk_bf16_f32 v{vP[x]+j}, v{vS[x]+2*j}, v{vS[x]+2*j+1}", 1, max(lo, 26 if x[0] == "b" else 0), hi)]
        chain(G, o, 0, nm, late=0.02)
        chain(G, [(vread(dt, s), 0, max(B + 1, 11 + 2 * dt), 36 + dt) for dt in range(8) for s in range(2)], B + 1, nm)
        self.xwrite(G, par, at["pv", "c"] + 12 if par else B + 1, X - 2)
        gx = self.xread(G, par, X + 1, X + 4)
        aC, gC = vS["c"], vS["c"] + 1
        t = vS["c"] + 2
        chain(G, [(s, 0) for s in (f"v_accvgpr_read_b32 v{vAux}, a{aStR}", f"s_lshr_b32 s{sT1}, s{sW}, 1", f"s_mul_i32 s{sT2}, s{sT1}, {2*WREG}",
                                   f"v_bfe_u32 v{t}, v{vOst}, 7, 3", f"v_and_b32 v{t+1}, 0x70, v{vOst}", f"v_mul_u32_u24 v{aC}, 272, v{t}",
                                   f"v_lshl_add_u32 v{gC}, v{t}, 8, v{t+1}", f"v_add3_u32 v{aC}, v{aC}, v{t+1}, s{sT2}",
                                   f"v_add_u32 v{aC}, {W0+8*GRP+128*par}, v{aC}", f"s_mul_i32 s{sT1}, s{sT1}, 36864",
                                   f"s_add_u32 s{sT1}, s{sT1}, {73728+16384+128*par}")], at["pv", "c"] if par else 2, at["pv", "a0"] + 8)

        def norm(x):
            p, r = at["pv", x], vR + 2 * (XS.index(x) & 1)
            o = [(f"v_accvgpr_read_b32 v{r+1}, {ar(aL[x])}", 0, p + 5), (f"v_rcp_f32 v{r}, v{r+1}", 0), (f"v_add_f32 v{vChk}, v{vChk}, v{r+1}", 0)]
            o += [(s, -1 if dt + i else 1, p + 8) for dt in range(8) for i, s in enumerate(self.pkmul(vO[x] + 4 * dt, r))]
            return o + [(s, 0) for dt in range(8) for s in self.pack(vO[x] + 4 * dt, vStA, XS.index(x) * 2 * GRP + dt * 32)]

        def rd(x):
            if x == "c":
                return [(f"ds_read_b128 {vr(vD+4*j,4)}, v{aC} offset:{j*GRP}", 0, 0, 999, "priv") for j in range(2)]
            return [(f"ds_read_b128 {vr(vO[x]+4*j,4)}, v{vAux} offset:{(2*par+4*XS.index(x)+j)*1088}", 0, 0, 999, "priv") for j in range(4)]

        def st(x):
            if x == "c":
                return [(self.store(vD + 4 * j, sT1, 2048 * j).replace(f"v{vOst},", f"v{gC},"), 1) for j in range(2)]
            return [(f"s_mov_b32 s{sT0}, {73728+(2*par+4*XS.index(x))*1024}", 0)] + [(self.store(vO[x] + 4 * j, sT0, j * 1024), 1 if j else 0) for j in range(4)]

        nc = self.norm_c(par, True)
        nc[0] = (nc[0][0], 0, gx + 5)
        flag = [(s, 0) for s in (f"v_cmp_ngt_f32 s[{sF}:{sF+1}], s{sLim}, v{vChk}", f"s_lshl_b32 s{sT2}, s{sW}, 2", f"v_mov_b32 v{vTm+2}, {FLAG}",
                                 f"v_add_u32 v{vTm}, s{sT2}, v{vTm+2}", f"s_cmp_lg_u64 s[{sF}:{sF+1}], 0", f"s_cselect_b32 s{sT2}, 1, 0",
                                 f"v_mov_b32 v{vTm+1}, s{sT2}", f"ds_write_b32 v{vTm}, v{vTm+1}")]
        if par:
            o = nc + rd("c") + norm("a0") + st("c") + rd("a0") + norm("a1") + st("a0") + rd("a1") + norm("b0") + st("a1")
        else:
            o = norm("a0") + rd("a0") + nc + st("a0") + rd("c") + norm("a1") + st("c") + rd("a1") + norm("b0") + st("a1")
        o += rd("b0") + norm("b1") + st("b0") + rd("b1") + flag + st("b1")
        g = chain(G, o, at["pv", "a0"], len(G) - 4, run=20)[-1] + 1
        self.barrier(G[g], "x")
        G[g].add(Op(f"ds_read_b128 {vr(vD,4)}, v{vTm+2}"))
        G[g + 1].valu += [Op(f"v_or3_b32 v{vD}, v{vD}, v{vD+1}, v{vD+2}"), Op(f"v_or_b32 v{vD}, v{vD}, v{vD+3}")]
        G[g + 1].post += [Op(s) for s in self.fin(par)]
        return G[:g + 2]

    def header(self):
        for line in open(f"cdna_kernels/{NAME}.s.ref").read().split("\n"):
            if line.startswith("; @launch"):
                break
            self.L.append(line)
        self.L += [f"; @launch grid=(256,1,1) block=(256,1,1) lds={LDS_BYTES}", '.amdgcn_target "amdgcn-amd-amdhsa--gfx950"', ".text",
                   f".globl {NAME}_kernel", ".p2align 12", ".p2align 8", f".type {NAME}_kernel,@function", f"{NAME}_kernel:"]

    def footer(self):
        self.L += ['.section .rodata,"a"', ".p2align 6", f".amdhsa_kernel {NAME}_kernel", "  .amdhsa_next_free_vgpr 512",
                   "  .amdhsa_next_free_sgpr 102", "  .amdhsa_accum_offset 256", "  .amdhsa_group_segment_fixed_size 0",
                   "  .amdhsa_kernarg_size 48", "  .amdhsa_user_sgpr_count 2", "  .amdhsa_user_sgpr_kernarg_segment_ptr 1",
                   "  .amdhsa_system_sgpr_workgroup_id_x 1", ".end_amdhsa_kernel"]

    def setup(self):
        t, lane = vTm, vL
        o = ["s_cmp_ge_u32 s2, 256", "s_cbranch_scc1 L_end", "s_load_dwordx4 s[4:7], s[0:1], 0", "s_load_dwordx4 s[8:11], s[0:1], 16"]
        if self.stamps:
            o += [f"s_load_dwordx2 s[{sWS}:{sWS+1}], s[0:1], 40", "s_memtime s[56:57]", "s_memrealtime s[58:59]", f"s_mov_b32 s{sNst}, 1"]
        if self.opt.get("pf", 1):
            o += ["s_getpc_b64 s[62:63]", "s_and_b32 s62, s62, 0xfffff000", "s_lshl_b32 s61, s2, 12", "s_and_b32 s61, s61, 0x8000",
                  f"v_lshl_add_u32 v{vR}, v0, 7, s61", f"v_min_u32 v{vR}, {self.npg*4096+4096-128}, v{vR}", f"v_mov_b32 v{vR+1}, s63",
                  f"v_add_co_u32 v{vR}, vcc, s62, v{vR}", f"v_addc_co_u32 v{vR+1}, vcc, 0, v{vR+1}, vcc",
                  f"global_load_dword v{vDead}, {vr(vR,2)}, off"]
        o += ["v_lshrrev_b32 v1, 6, v0", f"v_and_b32 v{lane}, 63, v0", f"v_readfirstlane_b32 s{sW}, v1",
              f"v_bfe_u32 v{t}, v{lane}, 2, 2", f"v_lshlrev_b32 v{vDMA}, 8, v{t}", f"v_lshrrev_b32 v{t}, 4, v{lane}",
              f"v_lshl_add_u32 v{vDMA}, v{t}, 6, v{vDMA}", f"v_and_b32 v{t}, 3, v{lane}", f"v_lshl_add_u32 v{vDMA}, v{t}, 4, v{vDMA}",
              f"s_mul_i32 s{sWStr}, s{sW}, {WSTR}", f"s_mul_i32 s{sT2}, s{sW}, 18432", f"v_lshl_add_u32 v{vOst}, v{lane}, 4, s{sT2}",
              f"s_mul_i32 s{sT0}, s2, 147456", f"s_lshl_b32 s{sT1}, s2, 18", f"s_mov_b32 s{sH}, 0", f"s_mov_b32 s{sBig}, 0x40000000",
              "s_mov_b64 vcc, 0"] + (self.warm(0) if self.opt.get("w0", 0) == 0 else []) + ["s_waitcnt lgkmcnt(0)"]
        for d, b, off, n in ((SRD_K, 6, sT1, 262144), (SRD_Q, 4, sT0, 147456), (SRD_V, 8, sT1, 262144 + 10240), (SRD_O, 10, sT0, 147456)):
            o += [f"s_add_u32 s{d}, s{b}, s{off}", f"s_addc_u32 s{d+1}, s{b+1}, 0"]
            if d == SRD_V:
                o += [f"s_sub_u32 s{d}, s{d}, 10240", f"s_subb_u32 s{d+1}, s{d+1}, 0"]
            o += [f"s_mov_b32 s{d+2}, {n}", f"s_mov_b32 s{d+3}, 0x20000"]
        if self.stamps:
            o += [f"v_writelane_b32 v{vSt0}, s56, 0", f"v_writelane_b32 v{vSt0+1}, s58, 0"]
        return o

    def consts(self):
        t, lane, r, g, x = vTm, vL, vTm + 1, vTm + 2, vTm + 3
        c = hex(f2u(128 ** -0.5 * 1.4426950408889634))
        o = [f"v_bfe_u32 v{lane}, v{vOst}, 4, 6", f"s_mov_b32 s{sC}, {c}", f"s_mov_b32 s{sC+1}, {c}",
             f"s_mov_b32 s{sLim}, {hex(f2u(2.0 ** self.lim))}", f"s_mov_b32 s{sMask}, 0xffff0000",
             f"s_mul_i32 s{sWbase}, s{sW}, {WREG}", f"s_add_u32 s{sWbase}, s{sWbase}, {W0}", f"s_sub_u32 s{sDum}, {DUMMY}, s{sWbase}",
             f"v_and_b32 v{r}, 15, v{lane}", f"v_lshrrev_b32 v{g}, 4, v{lane}", f"v_lshlrev_b32 v{vK0}, 4, v{g}",
             f"v_and_b32 v{t}, 3, v{r}", f"v_lshl_add_u32 v{x}, v{t}, 6, v{vK0}",
             f"v_lshlrev_b32 v{vVb}, 3, v{t}", f"v_lshrrev_b32 v{t}, 2, v{r}", f"v_lshl_add_u32 v{vVb}, v{t}, 6, v{vVb}",
             f"v_mul_u32_u24 v{vKb}, {WSTR}, v{t}", f"v_add_u32 v{vKb}, v{vKb}, v{x}",
             f"v_mul_u32_u24 v{t}, {WSTR}, v{g}", f"v_add_u32 v{vVb}, v{vVb}, v{t}",
             f"v_bfe_u32 v{t}, v{r}, 2, 1", f"v_lshl_add_u32 v{x}, v{t}, 10, v{x}", f"v_lshrrev_b32 v{t}, 3, v{r}",
             f"v_mul_u32_u24 v{t}, {GRP}, v{t}", f"v_add_u32 v{x}, v{x}, v{t}",
             f"s_and_b32 s{sT0}, s{sW}, 1", f"s_mul_i32 s{sT0}, s{sT0}, {GRP}", f"s_add_u32 s{sT0}, s{sT0}, s{sWbase}",
             f"s_lshr_b32 s{sT1}, s{sW}, 1", f"s_mul_i32 s{sT2}, s{sT1}, {2*WREG}", f"s_add_u32 s{sT2}, s{sT2}, {W0+8*GRP}",
             f"v_add_u32 v{vQa}, s{sT0}, v{x}", f"v_add_u32 v{vQc}, s{sT2}, v{x}",
             f"v_mul_u32_u24 v{x}, 272, v{r}", f"v_lshl_add_u32 v{x}, v{g}, 3, v{x}",
             f"v_add_u32 v{vStA}, s{sT0}, v{x}", f"v_add_u32 v{vStC}, s{sT2}, v{x}",
             f"v_mul_u32_u24 v{x}, 272, v{g}", f"v_lshl_add_u32 v{x}, v{r}, 4, v{x}", f"v_add_u32 v{x}, s{sWbase}, v{x}",
             f"v_accvgpr_write_b32 a{aStR}, v{x}", f"v_lshl_add_u32 v{vAuxB}, v{lane}, 4, s{sWbase}", f"v_mov_b32 v{vAux}, v{vAuxB}",
             f"s_mul_i32 s{sT0}, s{sT1}, {2*WSTR}", f"v_lshl_add_u32 v{vXc}, v{lane}, 4, s{sT0}",
             f"s_lshl_b32 s{sT0}, s{sT1}, 7", f"s_add_u32 s{sT0}, s{sT0}, {LX}", f"v_lshl_add_u32 v{vLx}, v{r}, 2, s{sT0}",
             f"v_mov_b32 v{vChk}, 0", f"v_add_u32 v{vK}, {4*STAGE}, v{vKb}", f"v_mov_b32 v{vV}, v{vVb}",
             f"v_and_b32 v{t}, 3, v{lane}", f"v_cmp_eq_u32 s[{sF}:{sF+1}], 0, v{t}", f"v_mov_b32 v{x}, 0x3f803f80", "s_nop 1",
             f"v_cndmask_b32 v{x}, 0, v{x}, s[{sF}:{sF+1}]"]
        o += [f"v_accvgpr_write_b32 a{aOne+i}, v{x}" for i in range(4)]
        o += [f"s_mov_b32 s{sRd}, 0", f"s_mov_b32 s{sT}, 14", f"s_mov_b32 s{sQm0}, s{sWbase}",
              f"s_mul_i32 s{sQoff}, s{sW}, 18432", f"s_add_u32 s{sQoff}, s{sQoff}, 73728", f"s_mov_b32 s{sRel}, {(-GRP) & 0xffffffff}"]
        return o

    def mark(self):
        if self.stamps < 2:
            return []
        return ["s_memtime s[56:57]", "s_memrealtime s[58:59]", f"s_mov_b32 s{sM0s}, m0", f"s_mov_b32 m0, s{sNst}", f"s_add_u32 s{sNst}, s{sNst}, 1",
                "s_waitcnt lgkmcnt(0)", f"v_writelane_b32 v{vSt0}, s56, m0", f"v_writelane_b32 v{vSt0+1}, s58, m0", f"s_mov_b32 m0, s{sM0s}", "s_nop 0"]

    def start(self):
        up = self.opt.get("up", 14)
        qd = [96 + 4 * j for j in range(18)]
        wA, wC, sA, sCc = vR + 2, vR + 3, 60, 61
        o = ["L_start:"] + self.mark() + [f"s_lshl_b32 s{sOff}, s{sW}, 11", f"s_add_u32 m0, s{sWStr}, {4*STAGE}",
             f"s_mul_i32 s{sT0}, s{sH}, 73728", f"s_mul_i32 s{sT1}, s{sW}, 18432"] + self.stage()[:2]
        o += [f"s_add_u32 s{sT0}, s{sT0}, s{sT1}", f"s_add_u32 s{sOff}, s{sOff}, 8192", f"s_and_b32 s{sT1}, s{sW}, 1",
              f"s_lshl_b32 s{sA}, s{sT1}, 11", f"s_add_u32 s{sA}, s{sA}, s{sT0}", f"s_xor_b32 s{sT1}, s{sT1}, 1",
              f"s_lshl_b32 s{sCc}, s{sT1}, 14", f"s_add_u32 s{sCc}, s{sCc}, s{sT0}"]
        todo = []
        for j in range(18):
            k, sr = (j, sCc) if j < 2 else (j - 2, sA)
            of = f" offset:{(k%4)*1024}" if k % 4 else ""
            todo.append([f"buffer_load_dwordx4 {vr(qd[j],4)}, v{vDMA}, s[{SRD_Q}:{SRD_Q+3}], s{sr} offen{of} {self.opt.get('ldq', self.ld)}"] +
                        ([f"s_add_u32 s{sA}, s{sA}, 4096"] if k % 4 == 3 else []))
        for g in range(4):
            st = self.stage()
            todo += [[f"s_add_u32 m0, s{sWStr}, {g*STAGE}", st[0]], [st[1]], [st[2]],
                     [st[3], f"s_add_u32 s{sOff}, s{sOff}, 8192", self.dummy(0), self.dummy(1)]]
        n = 2

        def issue(k):
            nonlocal n
            r = [t for it in todo[:k] for t in it]
            del todo[:k]
            n += sum(t.startswith("buffer") for t in r)
            return r

        o += issue(up) + (self.warm(0) if self.opt.get("w0", 0) else []) + self.mark() + self.consts()
        o += [f"s_and_b32 s{sT0}, s{sW}, 1", f"s_mul_i32 s{sT1}, s{sT0}, {GRP}", f"v_add_u32 v{wA}, s{sT1}, v{vAuxB}",
              f"s_mul_i32 s{sT1}, s{sT0}, {8*GRP}", f"v_subrev_u32 v{wC}, s{sT1}, v{vAuxB}", f"v_add_u32 v{vL}, {4*STAGE}, v{vK0}"]
        o += self.mark() + [t for v in range(3) for t in self.warm(1, v)] + self.mark()
        lg0 = "s_waitcnt lgkmcnt(0)"
        z = [f"v_mov_b64 {vr(168+2*i,2)}, 0" for i in range(28)] + [f"v_mov_b64 {vr(vP['b0']+2*i,2)}, 0" for i in range(4)]
        z += [f"v_accvgpr_write_b32 a{i}, 0" for i in list(range(aO, aO + 32)) + list(range(aV, aV + 52))]
        for j in range(18):
            o.append(f"s_waitcnt vmcnt({n-3-j})")
            o += self.mark() if j in (0, 8, 17) else []
            o += issue(1)
            for i in range(4):
                o += scale(qd[j] + i, i, True)
            x = {4: "c", 7: "a0", 11: "a1", 15: "b0"}
            if j in x:
                o += [lg0] + mchain(x[j])
            if j - 1 in x:
                o += negate(x[j - 1])
            if j == 9:
                o += [qk("a0", f) for f in range(8)]
            k = j - 2
            o.append(f"ds_write_b128 v{wC}, {vr(qd[j],4)} offset:{8*GRP+j*1024}" if j < 2 else
                     f"ds_write_b128 v{wA}, {vr(qd[j],4)} offset:{(k>>1)*GRP+(k&1)*1024}")
            if j == 1:
                o += [lg0, "s_barrier"] + [f"ds_read_b128 {ar(aK0+4*ks,4)}, v{vL} offset:{ks*256}" for ks in range(4)]
                o += [qread("c", ks) for ks in range(4)] + [kread(f) for f in range(8)]
            elif j % 4 == 1:
                o += [qread(XS[j // 4 - 1], ks) for ks in range(4)]
            if j:
                o += [f"v_mov_b64 {vr(qd[j-1]+2*i,2)}, 0" for i in range(2)]
            if 2 <= j < 14:
                o += z[10 * (j - 2):10 * (j - 1)]
        o += self.mark() + issue(99) + [f"s_add_u32 m0, s{sWStr}, {4*STAGE}"] + [f"v_mov_b64 {vr(qd[17]+2*i,2)}, 0" for i in range(2)]
        o += ["s_cbranch_vccnz L_prepass", lg0] + mchain("b1") + negate("b1")
        o += ["L_fix0r:", f"v_mov_b32 v{vK}, v{vKb}", f"s_bitcmp1_b32 s{sW}, 0", "s_cbranch_scc0 L_N0"]
        self.fix += ["L_prepass_ret:"] + [kread(f) for f in range(8)]
        self.fix += [f"v_accvgpr_read_b32 v{vM[x]+i}, a{aSave+n}" for n, x in enumerate(XS) for i in range(4)]
        self.fix += [lg0] + [qk("a0", f) for f in range(8)] + ["s_nop 7", "s_branch L_fix0r"]
        return o

    def warm(self, ph, v=0):
        if not self.opt.get("warm", 3) & (1 << ph):
            return [f"L_wb{v}:" if ph else "L_wa:"]
        if ph:
            return [t for w in range(4) if 4 * v + w < self.npg for t in (f"s_cmp_eq_u32 s{sW}, {w}", f"s_cbranch_scc1 L_pb{4*v+w}")] + [f"L_wb{v}:"]
        o = ["s_lshr_b32 s62, s2, 1", "s_and_b32 s62, s62, 12", f"s_add_u32 s62, s62, s{sW}"]
        return o + [t for k in range(self.npg) for t in (f"s_cmp_eq_u32 s62, {k}", f"s_cbranch_scc1 L_pa{k}")] + ["L_wa:"]

    def prepass(self):
        a, m = vR, vD
        o = ["L_prepass:", f"v_bfe_u32 v{a}, v{vOst}, 4, 4", f"v_lshl_add_u32 v{a}, v{a}, 8, v{vK0}", f"v_add_u32 v{a+1}, 4096, v{a}"]
        o += [f"v_mov_b32 v{m+n}, 0xff800000" for n in range(5)]
        o += [f"s_lshl_b32 s{sT0}, s{sH}, 17", f"s_mov_b32 s{sT1}, 16", "L_prepass_loop:"]
        o += [f"buffer_load_dwordx4 {ar(aK+4*f,4)}, v{a+(f>>2)}, s[{SRD_K}:{SRD_K+3}], s{sT0} offen offset:{(f&3)*64}" for f in range(8)]
        o.append("s_waitcnt vmcnt(0) lgkmcnt(0)")
        o += [qk(x, f, True) for x in XS for f in range(8)]
        o += [f"v_max3_f32 v{m+n}, v{m+n}, v{vS[x]+2*i}, v{vS[x]+2*i+1}" for n, x in enumerate(XS) for i in range(4)]
        o += [f"s_add_u32 s{sT0}, s{sT0}, 8192", f"s_sub_u32 s{sT1}, s{sT1}, 1", f"s_cmp_lg_u32 s{sT1}, 0", "s_cbranch_scc1 L_prepass_loop"]
        for n in range(5):
            for sw in ("v_permlane16_swap_b32", "v_permlane32_swap_b32"):
                o += [f"v_mov_b32 v{a}, v{m+n}", f"{sw} v{m+n}, v{a}", f"v_max_f32 v{m+n}, v{m+n}, v{a}"]
            o += [f"v_sub_f32 v{m+n}, 0, v{m+n}", f"v_accvgpr_read_b32 v{a}, a{aSave+n}", f"v_accvgpr_write_b32 a{aSave+5+n}, v{a}",
                  f"v_accvgpr_write_b32 a{aSave+n}, v{m+n}"]
        o += [f"s_cmp_eq_u32 s{sH}, 0", "s_cbranch_scc1 L_prepass_ret", f"s_mov_b32 s{sH}, 0", "s_barrier", "s_branch L_start"]
        return o

    def fin(self, par):
        o = ["s_nop 0", f"v_readfirstlane_b32 s{sT2}, v{vD}", f"s_cbranch_vccnz L_done{par}", f"s_cmp_lg_u32 s{sT2}, 0"]
        if not self.opt.get("noredo"):
            o.append("s_cbranch_scc1 L_redo")
        o.append(f"L_done{par}:")
        if self.stamps:
            o += ["s_waitcnt vmcnt(0)", "s_memtime s[56:57]", "s_memrealtime s[58:59]", f"s_mov_b32 m0, s{sNst}", "s_waitcnt lgkmcnt(0)",
                  f"v_writelane_b32 v{vSt0}, s56, m0", f"v_writelane_b32 v{vSt0+1}, s58, m0",
                  f"s_mov_b32 s{sWS+2}, 0x100000", f"s_mov_b32 s{sWS+3}, 0x20000", f"s_lshl_b32 s{sT0}, s2, 2", f"s_add_u32 s{sT0}, s{sT0}, s{sW}",
                  f"s_lshl_b32 s{sT0}, s{sT0}, 9", f"v_bfe_u32 v{vTm}, v{vOst}, 4, 6", f"v_lshlrev_b32 v{vTm}, 2, v{vTm}",
                  f"buffer_store_dword v{vSt0}, v{vTm}, s[{sWS}:{sWS+3}], s{sT0} offen",
                  f"buffer_store_dword v{vSt0+1}, v{vTm}, s[{sWS}:{sWS+3}], s{sT0} offen offset:256"]
        return o + ["s_endpgm"]

    def redo(self):
        return ["L_end:", "s_endpgm", "L_redo:", "s_mov_b64 vcc, -1", f"s_mov_b32 s{sH}, 1", "s_waitcnt vmcnt(0) lgkmcnt(0)", "s_barrier", "s_branch L_start"]

    def layout(self, segs):
        out, npg = [], 0
        for ops in segs:
            pos, first = (0, True) if out else (96, False)
            for t in ops:
                sz = isize(t)
                if first or (pos + sz > 4096 - 4 and not t.endswith(":")):
                    if not first:
                        out.append(f"s_branch L_pg{npg}")
                    out += [".p2align 12", f"L_pa{npg}:", "s_branch L_wa", f"L_pb{npg}:", f"s_branch L_wb{npg>>2}", f"L_pg{npg}:"]
                    npg, pos, first = npg + 1, 8, False
                out.append(t)
                pos += sz
        assert self.npg == npg
        return out

    def build(self):
        N, A, B, C = self.period(0, "N"), self.period(6, "A"), self.period(20, "B"), self.period(28, "C")
        T = [self.trans(0), self.trans(1)]
        E = [self.tail(0), self.tail(1)]
        N[0].lab, N[85].lab, A[0].lab, B[0].lab = ["L_N0:"], ["L_N85:"], ["L_A0:"], ["L_B0:"]
        T[0][0].lab, E[0][0].lab, C[0].lab = ["L_Ax:"], ["L_Cx:"], ["L_C0:"]
        vq = []
        for g in range(4):
            vq += [(Op(o), g) for o in self.stage()] + [(Op("s_nop 0"), None)] * 2
        tr = [N * 3 + A * 4 + A[:85] + T[0] + B * 5 + C + C[:85] + E[0], N[85:] + N * 2 + A * 5 + T[1] + B * 4 + C * 2 + E[1]]
        insert_waits([(t, vq) for t in tr])
        seg = {}
        for n, G in (("N", N), ("A", A), ("B", B), ("C", C), ("T0", T[0]), ("T1", T[1]), ("E0", E[0]), ("E1", E[1])):
            ops = [o for g in G for o in g.ops()]
            seg[n] = check_hazards(ops, n, True)
            print(n, "gaps", len(G), "ops", len(ops), "nops", len(seg[n]) - len(ops), "est", int(sum(gcost(g) + (16.3 if g.mfma else 0) + (9 if g.bar else 0) for g in G)),
                  "vm", [g.vm for g in G if g.vm is not None], file=sys.stderr)
        tx = {n: [o.t for o in seg[n]] for n in seg}
        upto = lambda n: seg[n][:tx[n].index(f"s_cbranch_scc1 L_{n}x") + 1]
        for a, b in [(seg[x], seg[y]) for x, y in ("NN", "NA", "AA", "BB", "BC", "CC", ("A", "T1"), ("T0", "B"), ("T1", "B"), ("C", "E1"))] + [(upto("A"), seg["T0"]), (upto("C"), seg["E0"])]:
            assert check_hazards(a[-14:] + b[:14], "seam") == 0
        fx = lambda l: [o.t for o in check_hazards([Op(t) for t in l], "s", True)]
        self.npg = 11
        head = fx(self.setup() + self.start()) + tx["N"][tx["N"].index("L_N85:") + 1:-1] + ["s_branch L_N0"] + self.redo()
        assert tx["N"][-1] == "s_cbranch_scc1 L_N0"
        body = self.layout([head, tx["N"] + ["s_branch L_A0"], tx["A"] + ["s_branch L_T1"], ["L_T1:"] + tx["T1"], tx["T0"],
                            tx["B"] + [f"s_and_b32 s{sT}, s{sW}, 1", f"s_add_u32 s{sT}, s{sT}, 2", "s_branch L_C0"], tx["C"] + ["s_branch L_E1"], ["L_E1:"] + tx["E1"], tx["E0"]])
        self.header()
        self.many(body + self.fix + fx(self.prepass()))
        self.footer()
        return "\n".join(self.L) + "\n"


if __name__ == "__main__":
    out = sys.argv[1]
    kw = {}
    for a in sys.argv[2:]:
        k, v = a.split("=")
        kw[k] = int(v) if v.lstrip("-").isdigit() else v.replace("_", " ")
    open(out, "w").write(Gen(**kw).build())
```

```python
import struct
import sys
from sched import Op, Gap, place, chain, gcost, insert_waits, check_hazards

NAME = "standalone__mha_softmax__near_ridge"

WSTR = 4128
STAGE = 4 * WSTR
RING = 5 * STAGE
GRP = 2176
W0 = RING
WREG = 9 * GRP
DUMMY = W0 + 4 * WREG
LX = DUMMY + 2048
FLAG = LX + 256
LDS_BYTES = FLAG + 64
assert LDS_BYTES <= 163840

sW = 3
SRD_Q, SRD_K, SRD_V, SRD_O = 12, 16, 20, 24
sC = 28
sRd, sOff, sWStr, sT, sH, sBig = 30, 31, 32, 33, 34, 35
sQm0, sQoff, sRel, sDum, sWbase = 36, 37, 38, 39, 40
sT0, sT1, sT2, sLim, sMask, sM0s, sNst = 41, 42, 43, 44, 45, 46, 47
sF = 48
sWS = 52
sKo, sVo, sRot, sOnes = 64, 65, 66, 67

vOst, vDMA, vKb, vVb, vK, vV, vQa, vQc, vStA, vStC, vAux, vAuxB, vXc, vLx, vChk, vK0 = range(16)
XS = ["a0", "a1", "b0", "b1", "c"]
vS = {x: 16 + 8 * i for i, x in enumerate(XS)}
vP = {x: 56 + 4 * i for i, x in enumerate(XS)}
vM = {x: 76 + 4 * i for i, x in enumerate(XS)}
vO = {x: 96 + 32 * i for i, x in enumerate(XS[:4])}
vR, vTm, vL, vDead, vSt0, vD = 224, 228, 232, 236, 238, 240
aO = 0
aQ = {x: 32 + 16 * i for i, x in enumerate(XS)}
aK, aV = 112, 144
aL = {x: 176 + 4 * i for i, x in enumerate(XS)}
aOne, aK0, aSave, aStR = 196, 200, 216, 226
MF = "v_mfma_f32_16x16x32_bf16"
SEQ = [("qk", "a1", 0), ("pv", "b", -1), ("qk", "c", 0), ("qk", "b0", 0), ("pv", "a", 0), ("qk", "b1", 0), ("pv", "c", 0),
       ("qk", "a0", 1), ("qk", "a1", 1), ("pv", "b", 0), ("qk", "b0", 1), ("qk", "b1", 1), ("pv", "a", 1), ("qk", "a0", 2)]
UNITS = [("a0", 0), ("a1", 0), ("c", 0), ("b0", 0), ("b1", 0), ("a0", 1), ("a1", 1), ("b0", 1), ("b1", 1)]


def f2u(x):
    return struct.unpack("<I", struct.pack("<f", x))[0]


def vr(b, n=1):
    return f"v{b}" if n == 1 else f"v[{b}:{b+n-1}]"


def ar(b, n=1):
    return f"a{b}" if n == 1 else f"a[{b}:{b+n-1}]"


def qk(x, f, zero=False):
    kt, ks = f >> 2, f & 3
    d = vr(vS[x] + 4 * kt, 4)
    c = d if ks else ("0" if zero else vr(vM[x], 4))
    return f"{MF} {d}, {ar(aK+4*f,4)}, {ar(aQ[x]+4*ks,4)}, {c}"


def pvgroup(X, first):
    xs = [X + "0", X + "1"] if X in "ab" else [X]
    r = [f"{MF} {ar(aL[x],4)}, {ar(aOne,4)}, {vr(vP[x],4)}, {'0' if first else ar(aL[x],4)}" for x in xs]
    for dt in range(8):
        for x in (xs if dt % 2 == 0 else xs[::-1]):
            o = ar(aO + 4 * dt, 4) if x == "c" else vr(vO[x] + 4 * dt, 4)
            r.append(f"{MF} {o}, {ar(aV+4*dt,4)}, {vr(vP[x],4)}, {'0' if first else o}")
    return r


def mchain(x):
    d = vr(vM[x], 4)
    return [f"{MF} {d}, {ar(aK0+4*ks,4)}, {ar(aQ[x]+4*ks,4)}, {d if ks else '0'}" for ks in range(4)]


def negate(x):
    return [f"v_sub_f32 v{vM[x]+i}, 0, v{vM[x]+i}" for i in range(4)]


def kread(f):
    return f"ds_read_b128 {ar(aK+4*f,4)}, v{vK} offset:{(f>>2)*1024+(f&3)*256}"


def vread(dt, s):
    return f"ds_read_b64_tr_b16 {ar(aV+4*dt+2*s,2)}, v{vV} offset:{2048+s*1024+(dt>>1)*256+(dt&1)*32}"


def qread(x, ks):
    a, b = (vQc, 0) if x == "c" else (vQa, XS.index(x) * 2 * GRP)
    return f"ds_read_b128 {ar(aQ[x]+4*ks,4)}, v{a} offset:{b+ks*256}"


def scale(d, n, pk=False):
    t = vTm + 2 * (n & 1)
    mul = [f"v_pk_mul_f32 {vr(t,2)}, {vr(t,2)}, s[{sC}:{sC+1}]"] if pk else [f"v_mul_f32 v{t+i}, s{sC}, v{t+i}" for i in range(2)]
    return [f"v_lshlrev_b32 v{t}, 16, v{d}", f"v_and_b32 v{t+1}, s{sMask}, v{d}"] + mul + [f"v_cvt_pk_bf16_f32 v{d}, v{t}, v{t+1}"]


def isize(op):
    if op.endswith(":"):
        return 0
    m = op.split()[0]
    if m.startswith(("v_mfma", "ds_", "buffer_", "v_cvt_pk", "v_pk_", "v_accvgpr", "v_lshl_add", "s_mem", "v_or3", "v_add3", "v_bfe", "v_writelane", "v_cmp")):
        return 8
    if m.startswith(("s_waitcnt", "s_barrier", "s_cbranch", "s_branch", "s_nop")):
        return 4
    for a in op[len(m):].split(","):
        try:
            if not -16 <= int(a.strip(), 0) <= 64:
                return 8
        except ValueError:
            pass
    return 4


def idx(G, *key):
    return [g.id for g in G].index(key)


class Gen:
    def __init__(self, ld="nt", st="sc0 sc1", stamps=0, lim=40, st0=22, **opt):
        self.L, self.ld, self.st, self.stamps, self.lim, self.st0, self.opt = [], ld, st, stamps, lim, st0, opt
        self.fix = []
        pair = opt.get("pair", 1)
        self.hs, self.o = (256 if pair else 1), int(pair == 2)
        self.H = [self.o * self.hs * 73728, (1 - self.o) * self.hs * 73728]
        self.ones = 0x1fe0000 if pair else 0
        self.ng = {"B": opt.get("gb", 0), "C": opt.get("gc", 3)}

    def e(self, s):
        self.L.append(s if s.endswith(":") else "    " + s)

    def many(self, lst):
        for s in lst:
            self.e(s)

    def dma(self, srd, soff, off):
        o = f" offset:{off}" if off else ""
        return f"buffer_load_dwordx4 v{vDMA}, s[{srd}:{srd+3}], s{soff} offen{o} {self.opt.get('ld' + 'qkv'[(srd - SRD_Q) >> 2], self.ld)} lds"

    def stage(self):
        return [self.dma(SRD_K, sKo, 0), self.dma(SRD_K, sKo, 1024), self.dma(SRD_V, sVo, 2048), self.dma(SRD_V, sVo, 3072)]

    def step(self):
        return [f"s_mov_b32 s{sVo}, s{sKo}", f"s_add_u32 s{sOff}, s{sOff}, 8192"] + [f"s_or_b32 s{sOff}, s{sOff}, s{sOnes}"] * (self.hs > 1) + [f"s_xor_b32 s{sKo}, s{sOff}, s{sRot}"]

    def dummy(self, i):
        return f"buffer_load_dword v{vDead+i}, v{vOst}, s[{SRD_Q}:{SRD_Q+3}], s{sBig} offen"

    def store(self, d, soff, off):
        o = f" offset:{off}" if off else ""
        return f"buffer_store_dwordx4 {vr(d,4)}, v{vOst}, s[{SRD_O}:{SRD_O+3}], s{soff} offen{o} {self.st}"

    def barrier(self, g, kind):
        g.bar = kind
        if self.stamps:
            g.lg = 0
            g.pre = [Op("s_memtime s[56:57]"), Op("s_memrealtime s[58:59]")]
            g.aft = [Op(t) for t in (f"s_mov_b32 s{sM0s}, m0", f"s_mov_b32 m0, s{sNst}", f"s_add_u32 s{sNst}, s{sNst}, 1", "s_nop 3",
                                     f"v_writelane_b32 v{vSt0}, s56, m0", f"v_writelane_b32 v{vSt0+1}, s58, m0", f"s_mov_b32 m0, s{sM0s}", "s_nop 0")]

    def period(self, t0, flav):
        G = []
        for kind, x, d in SEQ:
            t = t0 + d
            ms = [qk(x, f) for f in range(8)] if kind == "qk" else pvgroup(x, flav == "T" and (t == 16 or (x == "c" and t == 17)))
            for i, m in enumerate(ms):
                G.append(Gap(m if t < 32 else None))
                G[-1].id = (kind, x, t, i)
        assert len(G) == 153
        for k, (x, d) in enumerate(UNITS):
            if t0 + d < 32:
                for i in range(8):
                    G[17 * k + 2 * i].add(Op(f"v_exp_f32 v{vS[x]+i}, v{vS[x]+i}"))
                for j in range(4):
                    G[17 * k + 4 * j + 3].add(Op(f"v_cvt_pk_bf16_f32 v{vP[x]+j}, v{vS[x]+2*j}, v{vS[x]+2*j+1}"))
        for h, (B, pv0, pa, k0, kn, ck) in enumerate(((9, 8, 42, 60, 77, 84), (86, 93, 127, 119, 145, 152))):
            t = t0 + h
            if t >= 32:
                continue
            self.barrier(G[B], "ring")
            G[B].id2 = ("bar", t)
            G[ck].full = flav in "AC" or (flav in "NB" and h == 1)
            g = B
            if flav == "T" and t == 16:
                X = B + (13 if h == 0 else 12)
                par = t0 & 1
                self.xwrite(G, par, B + 1, X - 3)
                self.barrier(G[X], "x")
                g = self.xread(G, par, X + 1, X + 6) + 6
                G[g + 1].need = "ds"
                self.xpos = G[g + 1]
            for o in self.stage()[2 + 2 * h if flav == "C" else 0:]:
                g = place(G, o, g + 1, g + 6, tag="stage")
            if flav == "A":
                r0 = chain(G, [(f"s_add_u32 s{sRel}, s{sRel}, {GRP}", 1), (f"s_cmp_lt_u32 s{sRel}, {WREG}", 1),
                               (f"s_cselect_b32 s{sT1}, s{sRel}, s{sDum}", 1), (f"v_add_u32 v{vAux}, s{sT1}, v{vAuxB}", 0)] +
                           [(f"ds_read_b128 {vr(vD+4*p,4)}, v{vAux} offset:{1024*p}", 0) for p in range(2)], B + 1, B + 14)
                assert r0[2] <= g
            gv = 0
            for dt in range(8):
                for s in range(2):
                    gv = max(gv, place(G, vread(dt, s), max(B + 1, pv0 + 3 + 2 * dt), pa + 2 * dt - 4))
            if t + 1 >= 32:
                continue
            gk = 0
            for f in range(8):
                gk = max(gk, place(G, kread(f), k0 + f, kn + f - 7))
            ops = [(o, 1) for o in self.step()]
            adv = [(f"s_add_u32 m0, s{sRd}, s{sWStr}", 1), (f"s_add_u32 s{sRd}, s{sRd}, {STAGE}", 1),
                   (f"s_cmp_eq_u32 s{sRd}, {RING}", 1), (f"s_cselect_b32 s{sRd}, 0, s{sRd}", 1),
                   (f"v_add_u32 v{vV}, s{sRd}, v{vVb}", 0, gv), (f"v_add_u32 v{vK}, s{sRd}, v{vKb}", 0, gk)]
            side = None
            if flav == "A":
                ops += [(f"s_cmp_ge_u32 s{sT}, 6", 1), (f"s_cselect_b32 m0, s{sQm0}, {DUMMY}", 1),
                        (f"s_cselect_b32 s{sT0}, s{sQoff}, s{sBig}", 1),
                        (self.dma(SRD_Q, sT0, 0), 1), (self.dma(SRD_Q, sT0, 1024), 1),
                        (f"s_add_u32 s{sQm0}, s{sQm0}, {GRP}", 1), (f"s_add_u32 s{sQoff}, s{sQoff}, 2048", 1)]
                side = []
                for p in range(2):
                    for i in range(4):
                        side += [(o, 0) for o in scale(vD + 4 * p + i, i)]
                    side.append((f"ds_write_b128 v{vAux}, {vr(vD+4*p,4)} offset:{1024*p}", 0))
            elif flav == "N":
                ops += [(f"s_mov_b32 m0, s{sQm0}", 1), (self.dma(SRD_Q, sQoff, 0), 1), (self.dma(SRD_Q, sQoff, 1024), 1),
                        (f"s_add_u32 s{sQm0}, s{sQm0}, {GRP}", 1), (f"s_add_u32 s{sQoff}, s{sQoff}, 2048", 1), (f"s_sub_u32 s{sT}, s{sT}, 1", 1)]
            elif flav in "BC" and self.ng[flav]:
                n = self.ng[flav]
                reg = [vD + 4 * p for p in range(4)] + [vR, vR + 4]
                rd = [(f"ds_read_b128 {vr(reg[p],4)}, v{vAux} offset:{1088*p}", 0, 0, 999, "priv") for p in range(2 * n)]
                st = [(self.store(reg[p], sT1 if p > 3 else sT0, (p & 3) * 1024), 4 if p else 5) for p in range(2 * n)]
                ops += rd[:2] + [(f"s_cmp_ge_i32 s{sRel}, {self.H[0]}", 1), (f"s_cselect_b32 s{sT0}, s{sRel}, s{sBig}", 1),
                                 (f"s_add_u32 s{sRel}, s{sRel}, {2048*n}", 1)] + [(f"s_add_u32 s{sT1}, s{sT0}, 4096", 1)] * (n > 2)
                for p in range(2 * n):
                    ops += [st[p]] + rd[p + 2:p + 3]
                ops.append((f"v_add_u32 v{vAux}, {n*GRP}, v{vAux}", 0))
            elif flav == "T" and self.ng["B"]:
                ops += [(self.dummy(0), 1), (self.dummy(1), 1)]
            chain(G, ops + adv, g + 1, ck - 2)
            if side and not self.opt.get("noscale"):
                chain(G, side, r0[-1] + 7, ck - self.opt.get('sidehi', 5))
            if flav in "AC" or (flav == "B" and h):
                place(G, f"s_sub_u32 s{sT}, s{sT}, 1", ck - 1, ck - 1)
                G[ck].sc.append(Op(f"s_cbranch_scc1 L_{flav}x" if h == 0 else f"s_cbranch_scc0 L_{flav}0"))
            if flav == "N" and h == 1:
                place(G, f"s_cmp_ge_u32 s{sT}, 10", ck - 1, ck - 1)
                G[ck].sc.append(Op("s_cbranch_scc1 L_N0"))
        return G

    def xwrite(self, G, par, lo, hi):
        o = [(f"ds_write_b128 v{vXc}, {ar(aO+16*(1-par)+4*j,4)} offset:{(1-par)*WSTR+1024*j}", 0) for j in range(4)]
        o.append((f"ds_write_b32 v{vLx}, {ar(aL['c'])} offset:{(1-par)*64}", 0))
        return chain(G, o, lo, hi)[-1]

    def xread(self, G, par, lo, hi):
        o = [(f"ds_read_b128 {vr(vD+4*j,4)}, v{vXc} offset:{par*WSTR+1024*j}", 0, 0, 999, "x") for j in range(4)]
        o.append((f"ds_read_b32 v{vL}, v{vLx} offset:{par*64}", 0, 0, 999, "x"))
        return chain(G, o, lo, hi)[-1]

    def norm_c(self, par, pk=False):
        r = vL + 2
        o = [f"v_accvgpr_read_b32 v{vL+1}, {ar(aL['c'])}", f"v_add_f32 v{vL}, v{vL}, v{vL+1}", f"v_rcp_f32 v{r}, v{vL}",
             f"v_add_f32 v{vChk}, v{vChk}, v{vL}"]
        for j in range(4):
            d = vD + 4 * j
            o += [f"v_accvgpr_read_b32 v{vTm+i}, {ar(aO+16*par+4*j+i)}" for i in range(4)]
            if pk:
                o += [f"v_pk_add_f32 {vr(d+i,2)}, {vr(d+i,2)}, {vr(vTm+i,2)}" for i in (0, 2)] + self.pkmul(d, r)
            else:
                o += [f"v_add_f32 v{d+i}, v{d+i}, v{vTm+i}" for i in range(4)] + [f"v_mul_f32 v{d+i}, v{d+i}, v{r}" for i in range(4)]
            o += self.pack(d, vStC, (4 * par + j) * 32)
        return [(t, 0) for t in o]

    def pkmul(self, d, r):
        return [f"v_pk_mul_f32 {vr(d+i,2)}, {vr(d+i,2)}, {vr(r,2)} op_sel_hi:[1,0]" for i in (0, 2)]

    def pack(self, d, addr, off):
        return [f"v_cvt_pk_bf16_f32 v{d}, v{d}, v{d+1}", f"v_cvt_pk_bf16_f32 v{d+1}, v{d+2}, v{d+3}", f"ds_write_b64 v{addr}, {vr(d,2)} offset:{off}"]

    def norm(self, G, X, t, tn, lo, hi, nb=1):
        p = idx(G, "pv", X, t, 0)
        n = idx(G, "pv", X, tn, 0) if tn else 9999
        o = [(f"v_accvgpr_read_b32 v{vR+2*q+1}, {ar(aL[X+str(q)])}", 0) for q in range(2)]
        for q in range(2):
            o += [(f"v_rcp_f32 v{vR+2*q}, v{vR+2*q+1}", 0), (f"v_add_f32 v{vChk}, v{vChk}, v{vR+2*q+1}", 0)]
        g = chain(G, o, max(lo, p + 6), max(lo, p + 6) + 10)[-1]
        o = []
        per = 8 // nb
        for k in range(nb):
            dts = range(per * k, per * k + per)
            g = max(g + 1, p + 3 + 2 * dts[-1])
            while G[g].valu or G[g].bar:
                g += 1
            for dt in dts:
                for q in range(2):
                    x = X + str(q)
                    for s in self.pkmul(vO[x] + 4 * dt, vR + 2 * q):
                        G[g].add(Op(s))
                    o += [(s, 0, g, n + 2 * dt) for s in self.pack(vO[x] + 4 * dt, vStA, XS.index(x) * 2 * GRP + dt * 32)]
        return g, o

    def trans(self, par):
        if par == 0:
            G = self.period(14, "T")[85:] + self.period(16, "T")
            ins = {"a0": ("pv", "a", 15), "a1": ("qk", "a0", 16), "c": ("qk", "a1", 16), "b0": ("pv", "b", 15), "b1": ("qk", "c", 16)}
        else:
            G = self.period(15, "T") + self.period(17, "T")
            ins = {"a0": ("qk", "b1", 15), "a1": ("pv", "c", 15), "c": ("qk", "a0", 16), "b0": ("qk", "a1", 16), "b1": ("pv", "b", 15)}
        for x, key in ins.items():
            i = idx(G, *key, 0)
            new = [Gap(m) for m in mchain(x)]
            for n, g in enumerate(new):
                g.id = ("m", x, 16, n)
            G[i:i] = new
        b15 = [getattr(g, "id2", None) for g in G].index(("bar", 15))
        b16 = [getattr(g, "id2", None) for g in G].index(("bar", 16))
        m0 = idx(G, "m", "a0", 16, 0)
        chain(G, [(f"ds_read_b128 {ar(aK0+4*ks,4)}, v{vK0} offset:{ks*256}", 0) for ks in range(4)], b15 + 1, m0 - 8)
        for x in ins:
            last = 15 if (x != "c" or par) else 14
            lo = idx(G, "qk", x, last, 7) if ("qk", x, last, 7) in [g.id for g in G] else 0
            m = idx(G, "m", x, 16, 0)
            free = b16 - 1 if x == "c" else idx(G, "pv", x[0], 15, 0) + 16
            chain(G, [(qread(x, ks), 0) for ks in range(4)], lo, min(m - 8, free))
            nq = idx(G, "qk", x, 17 if (x == "c" and par) else 16, 0)
            lab = f"L_fix{par}{x}"
            r = chain(G, [(o, 0) for o in negate(x)], m + 8, nq - 2)
            G[r[-1]].post += [Op(f"s_cbranch_vccnz {lab}"), Op(f"{lab}r:")]
            self.fix += [f"{lab}:"] + [f"v_accvgpr_read_b32 v{vM[x]+i}, a{aSave+5+XS.index(x)}" for i in range(4)] + ["s_nop 1", f"s_branch {lab}r"]
        ga, oa = self.norm(G, "a", 15, 16, 0, 0)
        gb, ob = self.norm(G, "b", 15, 16, ga, 0)
        xp = G.index(self.xpos)
        todo = [(oa, ga, len(G)), (self.norm_c(par), xp, idx(G, "pv", "c", 16 + par, 0) - 1), (ob, gb, len(G))]
        for k in ((0, 1, 2), (0, 2, 1))[par]:
            chain(G, *todo[k])
        k = (10 - 2 * par) * self.ng["B"] + (3 + par) * self.ng["C"] - 9
        assert k >= 0
        chain(G, [(f"v_accvgpr_read_b32 v{vAux}, a{aStR}", 0), (f"v_subrev_u32 v{vAux}, {k*GRP}, v{vAux}", 0),
                  (f"s_mov_b32 s{sRel}, {(self.H[0] - k*2048) & 0xffffffff}", 0), (f"s_mov_b32 s{sT}, {4-par}", 1)], 2, 60)
        G[-1].post.append(Op("s_branch L_B0"))
        txt = [o.t for g in G for o in g.ops()]
        for n, x in enumerate(XS[:4]):
            wr = [i for i, t in enumerate(txt) if t.startswith(f"ds_write_b64 v{vStA},") and int(t.split(":")[-1]) // (2 * GRP) == n]
            assert len(wr) == 8 and min(wr) > max(txt.index(qread(x, ks)) for ks in range(4)), x
        return G

    def tail(self, par):
        seq = [[("qk", "a1"), ("pv", "b"), ("qk", "b0"), ("qk", "b1")],
               [("qk", "c"), ("pv", "b"), ("qk", "a1"), ("qk", "b0"), ("pv", "c"), ("qk", "b1")]][par] + [("pv", x) for x in XS[:4]]
        G, at = [], {}
        for kind, x in seq:
            at[kind, x] = len(G)
            G += [Gap(m) for m in ([qk(x, f) for f in range(8)] if kind == "qk" else pvgroup(x, False))]
        at["qk", "a0"] = -8
        nm = len(G)
        G += [Gap() for _ in range(90)]
        B = 9 if par else 1
        self.barrier(G[B], "ring")
        X = B + 54
        self.barrier(G[X], "x")
        o = []
        for x in [["a0", "a1", "b0", "b1"], ["a0", "c", "a1", "b0", "b1"]][par]:
            q, hi = at["qk", x], at["pv", x] - 2
            for j in range(4):
                lo = q + 8 + 4 * (j >> 1)
                o += [(f"v_exp_f32 v{vS[x]+i}, v{vS[x]+i}", 0, lo, hi) for i in (2 * j, 2 * j + 1)]
                o += [(f"v_cvt_pk_bf16_f32 v{vP[x]+j}, v{vS[x]+2*j}, v{vS[x]+2*j+1}", 1, max(lo, 26 if x[0] == "b" else 0), hi)]
        chain(G, o, 0, nm, late=0.02)
        chain(G, [(vread(dt, s), 0, max(B + 1, 11 + 2 * dt), 36 + dt) for dt in range(8) for s in range(2)], B + 1, nm)
        self.xwrite(G, par, at["pv", "c"] + 12 if par else B + 1, X - 2)
        gx = self.xread(G, par, X + 1, X + 4)
        aC, gC = vS["c"], vS["c"] + 1
        t = vS["c"] + 2
        chain(G, [(s, 0) for s in (f"v_accvgpr_read_b32 v{vAux}, a{aStR}", f"s_lshr_b32 s{sT1}, s{sW}, 1", f"s_mul_i32 s{sT2}, s{sT1}, {2*WREG}",
                                   f"v_bfe_u32 v{t}, v{vOst}, 7, 3", f"v_and_b32 v{t+1}, 0x70, v{vOst}", f"v_mul_u32_u24 v{aC}, 272, v{t}",
                                   f"v_lshl_add_u32 v{gC}, v{t}, 8, v{t+1}", f"v_add3_u32 v{aC}, v{aC}, v{t+1}, s{sT2}",
                                   f"v_add_u32 v{aC}, {W0+8*GRP+128*par}, v{aC}", f"s_mul_i32 s{sT1}, s{sT1}, 36864",
                                   f"s_add_u32 s{sT1}, s{sT1}, {self.H[1]+16384+128*par}")], at["pv", "c"] if par else 2, at["pv", "a0"] + 8)

        def norm(x):
            p, r = at["pv", x], vR + 2 * (XS.index(x) & 1)
            o = [(f"v_accvgpr_read_b32 v{r+1}, {ar(aL[x])}", 0, p + 5), (f"v_rcp_f32 v{r}, v{r+1}", 0), (f"v_add_f32 v{vChk}, v{vChk}, v{r+1}", 0)]
            o += [(s, -1 if dt + i else 1, p + 8) for dt in range(8) for i, s in enumerate(self.pkmul(vO[x] + 4 * dt, r))]
            return o + [(s, 0) for dt in range(8) for s in self.pack(vO[x] + 4 * dt, vStA, XS.index(x) * 2 * GRP + dt * 32)]

        def rd(x):
            if x == "c":
                return [(f"ds_read_b128 {vr(vD+4*j,4)}, v{aC} offset:{j*GRP}", 0, 0, 999, "priv") for j in range(2)]
            return [(f"ds_read_b128 {vr(vO[x]+4*j,4)}, v{vAux} offset:{(2*par+4*XS.index(x)+j)*1088}", 0, 0, 999, "priv") for j in range(4)]

        def st(x):
            if x == "c":
                return [(self.store(vD + 4 * j, sT1, 2048 * j).replace(f"v{vOst},", f"v{gC},"), 1) for j in range(2)]
            return [(f"s_mov_b32 s{sT0}, {self.H[1]+(2*par+4*XS.index(x))*1024}", 0)] + [(self.store(vO[x] + 4 * j, sT0, j * 1024), 1 if j else 0) for j in range(4)]

        nc = self.norm_c(par, True)
        nc[0] = (nc[0][0], 0, gx + 5)
        flag = [(s, 0) for s in (f"v_cmp_ngt_f32 s[{sF}:{sF+1}], s{sLim}, v{vChk}", f"s_lshl_b32 s{sT2}, s{sW}, 2", f"v_mov_b32 v{vTm+2}, {FLAG}",
                                 f"v_add_u32 v{vTm}, s{sT2}, v{vTm+2}", f"s_cmp_lg_u64 s[{sF}:{sF+1}], 0", f"s_cselect_b32 s{sT2}, 1, 0",
                                 f"v_mov_b32 v{vTm+1}, s{sT2}", f"ds_write_b32 v{vTm}, v{vTm+1}")]
        if par:
            o = nc + rd("c") + norm("a0") + st("c") + rd("a0") + norm("a1") + st("a0") + rd("a1") + norm("b0") + st("a1")
        else:
            o = norm("a0") + rd("a0") + nc + st("a0") + rd("c") + norm("a1") + st("c") + rd("a1") + norm("b0") + st("a1")
        o += rd("b0") + norm("b1") + st("b0") + rd("b1") + flag + st("b1")
        g = chain(G, o, at["pv", "a0"], len(G) - 4, run=20)[-1] + 1
        self.barrier(G[g], "x")
        G[g].add(Op(f"ds_read_b128 {vr(vD,4)}, v{vTm+2}"))
        G[g + 1].valu += [Op(f"v_or3_b32 v{vD}, v{vD}, v{vD+1}, v{vD+2}"), Op(f"v_or_b32 v{vD}, v{vD}, v{vD+3}")]
        G[g + 1].post += [Op(s) for s in self.fin(par)]
        return G[:g + 2]

    def header(self):
        for line in open(f"cdna_kernels/{NAME}.s.ref").read().split("\n"):
            if line.startswith("; @launch"):
                break
            self.L.append(line)
        self.L += [f"; @launch grid=(256,1,1) block=(256,1,1) lds={LDS_BYTES}", '.amdgcn_target "amdgcn-amd-amdhsa--gfx950"', ".text",
                   f".globl {NAME}_kernel", ".p2align 12", ".p2align 8", f".type {NAME}_kernel,@function", f"{NAME}_kernel:"]

    def footer(self):
        self.L += ['.section .rodata,"a"', ".p2align 6", f".amdhsa_kernel {NAME}_kernel", "  .amdhsa_next_free_vgpr 512",
                   "  .amdhsa_next_free_sgpr 102", "  .amdhsa_accum_offset 256", "  .amdhsa_group_segment_fixed_size 0",
                   "  .amdhsa_kernarg_size 48", "  .amdhsa_user_sgpr_count 2", "  .amdhsa_user_sgpr_kernarg_segment_ptr 1",
                   "  .amdhsa_system_sgpr_workgroup_id_x 1", ".end_amdhsa_kernel"]

    def setup(self):
        t, lane = vTm, vL
        o = ["s_cmp_ge_u32 s2, 256", "s_cbranch_scc1 L_end", "s_load_dwordx4 s[4:7], s[0:1], 0", "s_load_dwordx4 s[8:11], s[0:1], 16"]
        if self.stamps:
            o += [f"s_load_dwordx2 s[{sWS}:{sWS+1}], s[0:1], 40", "s_memtime s[56:57]", "s_memrealtime s[58:59]", f"s_mov_b32 s{sNst}, 1"]
        if self.opt.get("pf", 1):
            o += ["s_getpc_b64 s[62:63]", "s_and_b32 s62, s62, 0xfffff000", "s_lshl_b32 s61, s2, 12", "s_and_b32 s61, s61, 0x8000",
                  f"v_lshl_add_u32 v{vR}, v0, 7, s61", f"v_min_u32 v{vR}, {self.npg*4096+4096-128}, v{vR}", f"v_mov_b32 v{vR+1}, s63",
                  f"v_add_co_u32 v{vR}, vcc, s62, v{vR}", f"v_addc_co_u32 v{vR+1}, vcc, 0, v{vR+1}, vcc",
                  f"global_load_dword v{vDead}, {vr(vR,2)}, off"]
        o += ["v_lshrrev_b32 v1, 6, v0", f"v_and_b32 v{lane}, 63, v0", f"v_readfirstlane_b32 s{sW}, v1",
              f"v_bfe_u32 v{t}, v{lane}, 2, 2", f"v_lshlrev_b32 v{vDMA}, 8, v{t}", f"v_lshrrev_b32 v{t}, 4, v{lane}",
              f"v_lshl_add_u32 v{vDMA}, v{t}, 6, v{vDMA}", f"v_and_b32 v{t}, 3, v{lane}", f"v_lshl_add_u32 v{vDMA}, v{t}, 4, v{vDMA}",
              f"s_mul_i32 s{sWStr}, s{sW}, {WSTR}", f"s_mul_i32 s{sT2}, s{sW}, 18432", f"v_lshl_add_u32 v{vOst}, v{lane}, 4, s{sT2}",
              f"s_mul_i32 s{sT0}, s2, {73728 if self.hs > 1 else 147456}", f"s_lshl_b32 s{sT1}, s2, {17 if self.hs > 1 else 18}", f"s_mov_b32 s{sH}, 0", f"s_mov_b32 s{sBig}, 0x40000000",
              "s_mov_b64 vcc, 0"] + [f"s_mov_b32 s{sOnes}, {self.ones}", f"s_mov_b32 s{sRot}, {self.ones | self.o << 25}"] + (self.warm(0) if self.opt.get("w0", 0) == 0 else []) + ["s_waitcnt lgkmcnt(0)"]
        nk, nq = (self.hs + 1) * 131072, (self.hs + 1) * 73728
        for d, b, off, n in ((SRD_K, 6, sT1, nk), (SRD_Q, 4, sT0, nq), (SRD_V, 8, sT1, nk + 2048), (SRD_O, 10, sT0, nq)):
            o += [f"s_add_u32 s{d}, s{b}, s{off}", f"s_addc_u32 s{d+1}, s{b+1}, 0"]
            if d == SRD_V:
                o += [f"s_sub_u32 s{d}, s{d}, 2048", f"s_subb_u32 s{d+1}, s{d+1}, 0"]
            o += [f"s_mov_b32 s{d+2}, {n}", f"s_mov_b32 s{d+3}, 0x20000"]
        if self.stamps:
            o += [f"v_writelane_b32 v{vSt0}, s56, 0", f"v_writelane_b32 v{vSt0+1}, s58, 0"]
        return o

    def consts(self):
        t, lane, r, g, x = vTm, vL, vTm + 1, vTm + 2, vTm + 3
        c = hex(f2u(128 ** -0.5 * 1.4426950408889634))
        o = [f"v_bfe_u32 v{lane}, v{vOst}, 4, 6", f"s_mov_b32 s{sC}, {c}", f"s_mov_b32 s{sC+1}, {c}",
             f"s_mov_b32 s{sLim}, {hex(f2u(2.0 ** self.lim))}", f"s_mov_b32 s{sMask}, 0xffff0000",
             f"s_mul_i32 s{sWbase}, s{sW}, {WREG}", f"s_add_u32 s{sWbase}, s{sWbase}, {W0}", f"s_sub_u32 s{sDum}, {DUMMY}, s{sWbase}",
             f"v_and_b32 v{r}, 15, v{lane}", f"v_lshrrev_b32 v{g}, 4, v{lane}", f"v_lshlrev_b32 v{vK0}, 4, v{g}",
             f"v_and_b32 v{t}, 3, v{r}", f"v_lshl_add_u32 v{x}, v{t}, 6, v{vK0}",
             f"v_lshlrev_b32 v{vVb}, 3, v{t}", f"v_lshrrev_b32 v{t}, 2, v{r}", f"v_lshl_add_u32 v{vVb}, v{t}, 6, v{vVb}",
             f"v_mul_u32_u24 v{vKb}, {WSTR}, v{t}", f"v_add_u32 v{vKb}, v{vKb}, v{x}",
             f"v_mul_u32_u24 v{t}, {WSTR}, v{g}", f"v_add_u32 v{vVb}, v{vVb}, v{t}",
             f"v_bfe_u32 v{t}, v{r}, 2, 1", f"v_lshl_add_u32 v{x}, v{t}, 10, v{x}", f"v_lshrrev_b32 v{t}, 3, v{r}",
             f"v_mul_u32_u24 v{t}, {GRP}, v{t}", f"v_add_u32 v{x}, v{x}, v{t}",
             f"s_and_b32 s{sT0}, s{sW}, 1", f"s_mul_i32 s{sT0}, s{sT0}, {GRP}", f"s_add_u32 s{sT0}, s{sT0}, s{sWbase}",
             f"s_lshr_b32 s{sT1}, s{sW}, 1", f"s_mul_i32 s{sT2}, s{sT1}, {2*WREG}", f"s_add_u32 s{sT2}, s{sT2}, {W0+8*GRP}",
             f"v_add_u32 v{vQa}, s{sT0}, v{x}", f"v_add_u32 v{vQc}, s{sT2}, v{x}",
             f"v_mul_u32_u24 v{x}, 272, v{r}", f"v_lshl_add_u32 v{x}, v{g}, 3, v{x}",
             f"v_add_u32 v{vStA}, s{sT0}, v{x}", f"v_add_u32 v{vStC}, s{sT2}, v{x}",
             f"v_mul_u32_u24 v{x}, 272, v{g}", f"v_lshl_add_u32 v{x}, v{r}, 4, v{x}", f"v_add_u32 v{x}, s{sWbase}, v{x}",
             f"v_accvgpr_write_b32 a{aStR}, v{x}", f"v_lshl_add_u32 v{vAuxB}, v{lane}, 4, s{sWbase}", f"v_mov_b32 v{vAux}, v{vAuxB}",
             f"s_mul_i32 s{sT0}, s{sT1}, {2*WSTR}", f"v_lshl_add_u32 v{vXc}, v{lane}, 4, s{sT0}",
             f"s_lshl_b32 s{sT0}, s{sT1}, 7", f"s_add_u32 s{sT0}, s{sT0}, {LX}", f"v_lshl_add_u32 v{vLx}, v{r}, 2, s{sT0}",
             f"v_mov_b32 v{vChk}, 0", f"v_add_u32 v{vK}, {4*STAGE}, v{vKb}", f"v_mov_b32 v{vV}, v{vVb}",
             f"v_and_b32 v{t}, 3, v{lane}", f"v_cmp_eq_u32 s[{sF}:{sF+1}], 0, v{t}", f"v_mov_b32 v{x}, 0x3f803f80", "s_nop 1",
             f"v_cndmask_b32 v{x}, 0, v{x}, s[{sF}:{sF+1}]"]
        o += [f"v_accvgpr_write_b32 a{aOne+i}, v{x}" for i in range(4)]
        o += [f"s_mov_b32 s{sRd}, 0", f"s_mov_b32 s{sT}, 14", f"s_mov_b32 s{sQm0}, s{sWbase}",
              f"s_mul_i32 s{sQoff}, s{sW}, 18432", f"s_add_u32 s{sQoff}, s{sQoff}, {self.H[1]}", f"s_mov_b32 s{sRel}, {(-GRP) & 0xffffffff}"]
        return o

    def mark(self):
        if self.stamps < 2:
            return []
        return ["s_memtime s[56:57]", "s_memrealtime s[58:59]", f"s_mov_b32 s{sM0s}, m0", f"s_mov_b32 m0, s{sNst}", f"s_add_u32 s{sNst}, s{sNst}, 1",
                "s_waitcnt lgkmcnt(0)", f"v_writelane_b32 v{vSt0}, s56, m0", f"v_writelane_b32 v{vSt0+1}, s58, m0", f"s_mov_b32 m0, s{sM0s}", "s_nop 0"]

    def start(self):
        up = self.opt.get("up", 14)
        qd = [96 + 4 * j for j in range(18)]
        wA, wC, sA, sCc = vR + 2, vR + 3, 60, 61
        o = ["L_start:"] + self.mark() + [f"s_lshl_b32 s{sOff}, s{sW}, 11", f"s_or_b32 s{sOff}, s{sOff}, s{sOnes}", f"s_xor_b32 s{sKo}, s{sOff}, s{sRot}", f"s_add_u32 m0, s{sWStr}, {4*STAGE}",
             f"s_xor_b32 s{sT0}, s{sH}, {self.o}", f"s_mul_i32 s{sT0}, s{sT0}, {self.hs*73728}", f"s_mul_i32 s{sT1}, s{sW}, 18432"] + self.stage()[:2]
        o += self.step() + [f"s_add_u32 s{sT0}, s{sT0}, s{sT1}", f"s_and_b32 s{sT1}, s{sW}, 1",
              f"s_lshl_b32 s{sA}, s{sT1}, 11", f"s_add_u32 s{sA}, s{sA}, s{sT0}", f"s_xor_b32 s{sT1}, s{sT1}, 1",
              f"s_lshl_b32 s{sCc}, s{sT1}, 14", f"s_add_u32 s{sCc}, s{sCc}, s{sT0}"]
        todo = []
        for j in range(18):
            k, sr = (j, sCc) if j < 2 else (j - 2, sA)
            of = f" offset:{(k%4)*1024}" if k % 4 else ""
            todo.append([f"buffer_load_dwordx4 {vr(qd[j],4)}, v{vDMA}, s[{SRD_Q}:{SRD_Q+3}], s{sr} offen{of} {self.opt.get('ldq', self.ld)}"] +
                        ([f"s_add_u32 s{sA}, s{sA}, 4096"] if k % 4 == 3 else []))
        for g in range(4):
            st = self.stage()
            todo += [[f"s_add_u32 m0, s{sWStr}, {g*STAGE}", st[0]], [st[1]], [st[2]],
                     [st[3]] + self.step() + [self.dummy(0), self.dummy(1)]]
        n = 2

        def issue(k):
            nonlocal n
            r = [t for it in todo[:k] for t in it]
            del todo[:k]
            n += sum(t.startswith("buffer") for t in r)
            return r

        o += issue(up) + (self.warm(0) if self.opt.get("w0", 0) else []) + self.mark() + self.consts()
        o += [f"s_and_b32 s{sT0}, s{sW}, 1", f"s_mul_i32 s{sT1}, s{sT0}, {GRP}", f"v_add_u32 v{wA}, s{sT1}, v{vAuxB}",
              f"s_mul_i32 s{sT1}, s{sT0}, {8*GRP}", f"v_subrev_u32 v{wC}, s{sT1}, v{vAuxB}", f"v_add_u32 v{vL}, {4*STAGE}, v{vK0}"]
        o += self.mark() + [t for v in range(3) for t in self.warm(1, v)] + self.mark()
        lg0 = "s_waitcnt lgkmcnt(0)"
        z = [f"v_mov_b64 {vr(168+2*i,2)}, 0" for i in range(28)] + [f"v_mov_b64 {vr(vP['b0']+2*i,2)}, 0" for i in range(4)]
        z += [f"v_accvgpr_write_b32 a{i}, 0" for i in list(range(aO, aO + 32)) + list(range(aV, aV + 52))]
        for j in range(18):
            o.append(f"s_waitcnt vmcnt({n-3-j})")
            o += self.mark() if j in (0, 8, 17) else []
            o += issue(1)
            for i in range(4):
                o += scale(qd[j] + i, i, True)
            x = {4: "c", 7: "a0", 11: "a1", 15: "b0"}
            if j in x:
                o += [lg0] + mchain(x[j])
            if j - 1 in x:
                o += negate(x[j - 1])
            if j == 9:
                o += [qk("a0", f) for f in range(8)]
            k = j - 2
            o.append(f"ds_write_b128 v{wC}, {vr(qd[j],4)} offset:{8*GRP+j*1024}" if j < 2 else
                     f"ds_write_b128 v{wA}, {vr(qd[j],4)} offset:{(k>>1)*GRP+(k&1)*1024}")
            if j == 1:
                o += [lg0, "s_barrier"] + [f"ds_read_b128 {ar(aK0+4*ks,4)}, v{vL} offset:{ks*256}" for ks in range(4)]
                o += [qread("c", ks) for ks in range(4)] + [kread(f) for f in range(8)]
            elif j % 4 == 1:
                o += [qread(XS[j // 4 - 1], ks) for ks in range(4)]
            if j:
                o += [f"v_mov_b64 {vr(qd[j-1]+2*i,2)}, 0" for i in range(2)]
            if 2 <= j < 14:
                o += z[10 * (j - 2):10 * (j - 1)]
        o += self.mark() + issue(99) + [f"s_add_u32 m0, s{sWStr}, {4*STAGE}"] + [f"v_mov_b64 {vr(qd[17]+2*i,2)}, 0" for i in range(2)]
        o += ["s_cbranch_vccnz L_prepass", lg0] + mchain("b1") + negate("b1")
        o += ["L_fix0r:", f"v_mov_b32 v{vK}, v{vKb}", f"s_bitcmp1_b32 s{sW}, 0", "s_cbranch_scc0 L_N0"]
        self.fix += ["L_prepass_ret:"] + [kread(f) for f in range(8)]
        self.fix += [f"v_accvgpr_read_b32 v{vM[x]+i}, a{aSave+n}" for n, x in enumerate(XS) for i in range(4)]
        self.fix += [lg0] + [qk("a0", f) for f in range(8)] + ["s_nop 7", "s_branch L_fix0r"]
        return o

    def warm(self, ph, v=0):
        if not self.opt.get("warm", 2) & (1 << ph):
            return [f"L_wb{v}:" if ph else "L_wa:"]
        if ph:
            return [t for w in range(4) if 4 * v + w < self.npg for t in (f"s_cmp_eq_u32 s{sW}, {w}", f"s_cbranch_scc1 L_pb{4*v+w}")] + [f"L_wb{v}:"]
        o = ["s_lshr_b32 s62, s2, 1", "s_and_b32 s62, s62, 12", f"s_add_u32 s62, s62, s{sW}"]
        return o + [t for k in range(self.npg) for t in (f"s_cmp_eq_u32 s62, {k}", f"s_cbranch_scc1 L_pa{k}")] + ["L_wa:"]

    def prepass(self):
        a, m = vR, vD
        o = ["L_prepass:", f"v_bfe_u32 v{a}, v{vOst}, 4, 4", f"v_lshl_add_u32 v{a}, v{a}, 8, v{vK0}", f"v_add_u32 v{a+1}, 4096, v{a}"]
        o += [f"v_mov_b32 v{m+n}, 0xff800000" for n in range(5)]
        o += [f"s_xor_b32 s{sT0}, s{sH}, {self.o}", f"s_mul_i32 s{sT0}, s{sT0}, {self.hs*131072}", f"s_mov_b32 s{sT1}, 16", "L_prepass_loop:"]
        o += [f"buffer_load_dwordx4 {ar(aK+4*f,4)}, v{a+(f>>2)}, s[{SRD_K}:{SRD_K+3}], s{sT0} offen offset:{(f&3)*64}" for f in range(8)]
        o.append("s_waitcnt vmcnt(0) lgkmcnt(0)")
        o += [qk(x, f, True) for x in XS for f in range(8)]
        o += [f"v_max3_f32 v{m+n}, v{m+n}, v{vS[x]+2*i}, v{vS[x]+2*i+1}" for n, x in enumerate(XS) for i in range(4)]
        o += [f"s_add_u32 s{sT0}, s{sT0}, 8192", f"s_sub_u32 s{sT1}, s{sT1}, 1", f"s_cmp_lg_u32 s{sT1}, 0", "s_cbranch_scc1 L_prepass_loop"]
        for n in range(5):
            for sw in ("v_permlane16_swap_b32", "v_permlane32_swap_b32"):
                o += [f"v_mov_b32 v{a}, v{m+n}", f"{sw} v{m+n}, v{a}", f"v_max_f32 v{m+n}, v{m+n}, v{a}"]
            o += [f"v_sub_f32 v{m+n}, 0, v{m+n}", f"v_accvgpr_read_b32 v{a}, a{aSave+n}", f"v_accvgpr_write_b32 a{aSave+5+n}, v{a}",
                  f"v_accvgpr_write_b32 a{aSave+n}, v{m+n}"]
        o += [f"s_cmp_eq_u32 s{sH}, 0", "s_cbranch_scc1 L_prepass_ret", f"s_mov_b32 s{sH}, 0", "s_barrier", "s_branch L_start"]
        return o

    def fin(self, par):
        o = ["s_nop 0", f"v_readfirstlane_b32 s{sT2}, v{vD}", f"s_cbranch_vccnz L_done{par}", f"s_cmp_lg_u32 s{sT2}, 0"]
        if not self.opt.get("noredo"):
            o.append("s_cbranch_scc1 L_redo")
        o.append(f"L_done{par}:")
        if self.stamps:
            o += ["s_waitcnt vmcnt(0)", "s_memtime s[56:57]", "s_memrealtime s[58:59]", f"s_mov_b32 m0, s{sNst}", "s_waitcnt lgkmcnt(0)",
                  f"v_writelane_b32 v{vSt0}, s56, m0", f"v_writelane_b32 v{vSt0+1}, s58, m0",
                  f"s_mov_b32 s{sWS+2}, 0x100000", f"s_mov_b32 s{sWS+3}, 0x20000", f"s_lshl_b32 s{sT0}, s2, 2", f"s_add_u32 s{sT0}, s{sT0}, s{sW}",
                  f"s_lshl_b32 s{sT0}, s{sT0}, 9", f"v_bfe_u32 v{vTm}, v{vOst}, 4, 6", f"v_lshlrev_b32 v{vTm}, 2, v{vTm}",
                  f"buffer_store_dword v{vSt0}, v{vTm}, s[{sWS}:{sWS+3}], s{sT0} offen",
                  f"buffer_store_dword v{vSt0+1}, v{vTm}, s[{sWS}:{sWS+3}], s{sT0} offen offset:256"]
        return o + ["s_endpgm"]

    def redo(self):
        return ["L_end:", "s_endpgm", "L_redo:", "s_mov_b64 vcc, -1", f"s_mov_b32 s{sH}, 1", "s_waitcnt vmcnt(0) lgkmcnt(0)", "s_barrier", "s_branch L_start"]

    def layout(self, segs):
        out, npg = [], 0
        for ops in segs:
            pos, first = (0, True) if out else (96, False)
            for t in ops:
                sz = isize(t)
                if first or (pos + sz > 4096 - 4 and not t.endswith(":")):
                    if not first:
                        out.append(f"s_branch L_pg{npg}")
                    out += [".p2align 12", f"L_pa{npg}:", "s_branch L_wa", f"L_pb{npg}:", f"s_branch L_wb{npg>>2}", f"L_pg{npg}:"]
                    npg, pos, first = npg + 1, 8, False
                out.append(t)
                pos += sz
        assert self.npg == npg
        return out

    def build(self):
        N, A, B, C = self.period(0, "N"), self.period(6, "A"), self.period(20, "B"), self.period(28, "C")
        T = [self.trans(0), self.trans(1)]
        E = [self.tail(0), self.tail(1)]
        N[0].lab, N[85].lab, A[0].lab, B[0].lab = ["L_N0:"], ["L_N85:"], ["L_A0:"], ["L_B0:"]
        T[0][0].lab, E[0][0].lab, C[0].lab = ["L_Ax:"], ["L_Cx:"], ["L_C0:"]
        vq = []
        for g in range(4):
            vq += [(Op(o), g) for o in self.stage()] + [(Op("s_nop 0"), None)] * 2
        tr = [N * 3 + A * 4 + A[:85] + T[0] + B * 5 + C + C[:85] + E[0], N[85:] + N * 2 + A * 5 + T[1] + B * 4 + C * 2 + E[1]]
        insert_waits([(t, vq) for t in tr])
        seg = {}
        for n, G in (("N", N), ("A", A), ("B", B), ("C", C), ("T0", T[0]), ("T1", T[1]), ("E0", E[0]), ("E1", E[1])):
            ops = [o for g in G for o in g.ops()]
            seg[n] = check_hazards(ops, n, True)
            print(n, "gaps", len(G), "ops", len(ops), "nops", len(seg[n]) - len(ops), "est", int(sum(gcost(g) + (16.3 if g.mfma else 0) + (9 if g.bar else 0) for g in G)),
                  "vm", [g.vm for g in G if g.vm is not None], file=sys.stderr)
        tx = {n: [o.t for o in seg[n]] for n in seg}
        upto = lambda n: seg[n][:tx[n].index(f"s_cbranch_scc1 L_{n}x") + 1]
        for a, b in [(seg[x], seg[y]) for x, y in ("NN", "NA", "AA", "BB", "BC", "CC", ("A", "T1"), ("T0", "B"), ("T1", "B"), ("C", "E1"))] + [(upto("A"), seg["T0"]), (upto("C"), seg["E0"])]:
            assert check_hazards(a[-14:] + b[:14], "seam") == 0
        fx = lambda l: [o.t for o in check_hazards([Op(t) for t in l], "s", True)]
        self.npg = 11
        head = fx(self.setup() + self.start()) + tx["N"][tx["N"].index("L_N85:") + 1:-1] + ["s_branch L_N0"] + self.redo()
        assert tx["N"][-1] == "s_cbranch_scc1 L_N0"
        body = self.layout([head, tx["N"] + ["s_branch L_A0"], tx["A"] + ["s_branch L_T1"], ["L_T1:"] + tx["T1"], tx["T0"],
                            tx["B"] + [f"s_and_b32 s{sT}, s{sW}, 1", f"s_add_u32 s{sT}, s{sT}, 2", "s_branch L_C0"], tx["C"] + ["s_branch L_E1"], ["L_E1:"] + tx["E1"], tx["E0"]])
        self.header()
        self.many(body + self.fix + fx(self.prepass()))
        self.footer()
        return "\n".join(self.L) + "\n"


if __name__ == "__main__":
    out = sys.argv[1]
    kw = {}
    for a in sys.argv[2:]:
        k, v = a.split("=")
        kw[k] = int(v) if v.lstrip("-").isdigit() else v.replace("_", " ")
    open(out, "w").write(Gen(**kw).build())
```
